```python
import torch

def _softmax(x, axis=-1):
    return torch.softmax(x, dim=axis)
def _gelu(x):
    return torch.nn.functional.gelu(x, approximate="tanh")
def _silu(x):
    return torch.nn.functional.silu(x)
def _sigmoid(x):
    return torch.sigmoid(x)
def _layernorm(x, axis=-1, eps=1e-5):
    m = x.mean(dim=axis, keepdim=True)
    v = x.var(dim=axis, keepdim=True, unbiased=False)
    return (x - m) / torch.sqrt(v + eps)
def _scatter_add(tgt, idx, src, axis=0):
    return tgt.clone().index_add_(axis, idx, src)
def _segment_sum(src, seg, n):
    out = torch.zeros((n,) + src.shape[1:], dtype=src.dtype)
    return out.index_add_(0, seg, src)
def _pad(x, pw):
    flat = tuple(v for pair in reversed(pw) for v in pair)
    return torch.nn.functional.pad(x, flat)

kernel_name = 'standalone__edge_featured_mpnn_gatedgcn__graph'

def setup_inputs():

    _w = (lambda a: (lambda t: t.to(torch.bfloat16) if t.is_floating_point() else t)(torch.as_tensor(a)))
    N, deg, D, De = 10000, 16, 256, max(0, 1)
    E = N * deg
    return {
        "x": _w((lambda *s: torch.randn(*s, dtype=torch.bfloat16) * 0.4)(N, D)),
        "e_attr": _w((lambda *s: torch.randn(*s, dtype=torch.bfloat16) * 0.8)(E, De)),
        "src": _w((lambda lo, hi, *s: torch.randint(lo, hi, s))(0, N, E).to(torch.int64)),
        "dst": _w((lambda lo, hi, *s: torch.randint(lo, hi, s))(0, N, E).to(torch.int64)),
        "w_a": _w((lambda *s: torch.randn(*s, dtype=torch.bfloat16) * 0.4)(D, D)),
        "w_b": _w((lambda *s: torch.randn(*s, dtype=torch.bfloat16) * 0.4)(D, D)),
        "w_c": _w((lambda *s: torch.randn(*s, dtype=torch.bfloat16) * 0.8)(De, D)),
        "w_u": _w((lambda *s: torch.randn(*s, dtype=torch.bfloat16) * 0.05)(D, D)),
        "w_v": _w((lambda *s: torch.randn(*s, dtype=torch.bfloat16) * 0.05)(D, D)),
    }

def reference(x, e_attr, src, dst, w_a, w_b, w_c, w_u, w_v):
    N, D = x.shape
    hv = x @ w_v
    g = x[dst] @ w_a + x[src] @ w_b + e_attr @ w_c
    eta = _sigmoid(g)
    denom = _segment_sum(eta, dst, N) + 1e-6
    eta_n = eta / denom[dst]
    agg = _segment_sum(eta_n * hv[src], dst, N)
    z = x @ w_u + agg
    relu_z = torch.where(z > 0, z, 0 * z)
    return x + relu_z
```

```python
import sys, struct

NAME = "standalone__edge_featured_mpnn_gatedgcn__graph"
K1 = "gcn_prep_kernel"
K2 = "gcn_aggr_kernel"

ROWS = 10248
SS = ROWS * 128
OFF_BV = 0
OFF_AU = 8 * SS
OFF_FL = 16 * SS
OFF_ENDS = OFF_FL + 4096
OFF_BINS = 0x1500000
BINSTRIDE = 0x140000
HALF = 0xA0000
DUMMY_ROW = 10240
WS_BYTES = 0x10000000

def f32(x):
    return struct.unpack("<I", struct.pack("<f", x))[0]

NLOG2E = f32(-1.4426950408889634)
CFG = dict(P=3, NB=3, st1="sc1", stamps=0)
for a in sys.argv[2:]:
    k, v = a.split("=")
    CFG[k] = int(v) if v.lstrip("-").isdigit() else v


class Asm:
    def __init__(self):
        self.L = []
        self.vm = []
        self.lg = []
        self.n = 0

    def __call__(self, s):
        for line in s.strip().split("\n"):
            line = line.strip()
            if not line:
                continue
            self.L.append("    " + line if not line.endswith(":") else line)
            if not line.endswith(":") and not line.startswith(";") and not line.startswith("."):
                self.n += 1

    def label(self, l):
        self.L.append(l + ":")

    def vmem(self, s, tag=None):
        self(s)
        self.vm.append(tag)

    def lds(self, s, tag=None):
        self(s)
        self.lg.append(tag)

    def _cnt(self, lst, tag):
        idx = [i for i, t in enumerate(lst) if t == tag]
        if not idx:
            return None
        return len(lst) - 1 - idx[-1]

    def wait(self, vm=None, lg=None):
        parts = []
        if vm is not None:
            n = self._cnt(self.vm, vm)
            if n is not None:
                self.vm = self.vm[len(self.vm) - n:] if n else []
                parts.append(f"vmcnt({min(n, 63)})")
        if lg is not None:
            n = self._cnt(self.lg, lg)
            if n is not None:
                self.lg = self.lg[len(self.lg) - n:] if n else []
                parts.append(f"lgkmcnt({min(n, 15)})")
        if parts:
            self("s_waitcnt " + " ".join(parts))

    def wait_all(self, vm=False, lg=False):
        parts = []
        if vm:
            self.vm = []
            parts.append("vmcnt(0)")
        if lg:
            self.lg = []
            parts.append("lgkmcnt(0)")
        self("s_waitcnt " + " ".join(parts))


def vr(a, n=1):
    return f"v{a}" if n == 1 else f"v[{a}:{a + n - 1}]"


def sr(a, n=1):
    return f"s{a}" if n == 1 else f"s[{a}:{a + n - 1}]"


def srd(A, s, lo, hi, nrec, stride=0):
    A(f"s_mov_b32 s{s}, s{lo}")
    if stride:
        A(f"s_or_b32 s{s+1}, s{hi}, {hex(stride << 16)}")
    else:
        A(f"s_mov_b32 s{s+1}, s{hi}")
    A(f"s_mov_b32 s{s+2}, {hex(nrec)}")
    A(f"s_mov_b32 s{s+3}, 0x00020000")


S_X, S_E, S_SRC, S_DST, S_WA, S_WB, S_WC, S_WU, S_WV, S_OUT, S_DBG, S_WS = range(4, 28, 2)


def stamp(A, k, base=90):
    if CFG["stamps"]:
        A(f"s_memtime s[{base}:{base+1}]")
        A("s_waitcnt lgkmcnt(0)")
        A.lg = []
        A(f"s_sub_u32 s{base+2+k}, s{base}, s{base+2}" if k else f"s_mov_b32 s{base+2}, s{base}")


def gen_k1(A):
    P = CFG["P"]
    NT = 10
    LDS_CNT = 81920
    A.label(K1)
    A("s_getpc_b64 s[60:61]")
    A("s_load_dwordx16 s[4:19], s[0:1], 0")
    A("s_load_dwordx8 s[20:27], s[0:1], 64")
    A("s_cmp_ge_u32 s2, 256")
    A("s_cbranch_scc1 K1_end")
    A("v_lshlrev_b32 v1, 6, v0")
    A("v_min_u32 v1, K1_CODE_LIM, v1")
    A.vmem("global_load_dword v15, v1, s[60:61]", "pf")
    A("v_lshrrev_b32 v1, 6, v0")
    A("v_and_b32 v0, 63, v0")
    A("v_readfirstlane_b32 s3, v1")
    A("s_and_b32 s52, s2, 7")
    A("s_lshr_b32 s53, s2, 3")
    A("s_lshl_b32 s52, s52, 3")
    A("s_lshr_b32 s54, s53, 2")
    A("s_add_u32 s52, s52, s54")
    A("s_and_b32 s53, s53, 3")
    A("s_cmp_eq_u32 s3, 4")
    A("s_cbranch_scc1 K1_helper")
    WB = 112
    ACC = 48
    XF = 32
    OUT = 16
    T0, T1, CV = 24, 25, 26
    VMAX = 28
    VA = 2
    VX0, VX1 = 4, 5
    VR = 6
    VST = 10
    A("v_and_b32 v11, 15, v0")
    A("v_lshrrev_b32 v12, 4, v0")
    A("s_and_b32 s54, s53, 1")
    A("s_lshl_b32 s54, s54, 2")
    A("s_add_u32 s54, s54, s3")
    A("v_and_b32 v13, 1, v0")
    A("v_lshlrev_b32 v13, 5, v13")
    A("v_lshrrev_b32 v14, 2, v11")
    A("v_lshl_add_u32 v13, v14, 3, v13")
    A("v_lshl_add_u32 v13, v12, 12, v13")
    A("s_lshl_b32 s55, s54, 6")
    A("v_add_u32 v13, s55, v13")
    A("v_lshrrev_b32 v14, 5, v0")
    A("s_lshl_b32 s55, s3, 2")
    A("v_add_u32 v14, s55, v14")
    A("v_and_b32 v16, 31, v0")
    A("v_xor_b32 v17, v16, v14")
    A(f"v_lshlrev_b32 v{VX0}, 9, v14")
    A(f"v_xor_b32 v18, 2, v17")
    A(f"v_lshl_add_u32 v{VX1}, v18, 4, v{VX0}")
    A(f"v_lshl_add_u32 v{VX0}, v17, 4, v{VX0}")
    A("v_and_b32 v14, 2, v0")
    A("v_cmp_ne_u32 vcc, 0, v14")
    A("s_mul_i32 s56, s52, 160*512")
    A("s_lshl_b32 s57, s3, 11")
    A("s_mov_b32 s62, 16384")
    A("s_mov_b32 s63, 0")
    A("s_waitcnt lgkmcnt(0)")
    srd(A, 28, S_X, S_X + 1, 10000 * 512)
    A("s_cmp_lt_u32 s53, 2")
    A(f"s_cselect_b64 s[58:59], s[{S_WB}:{S_WB+1}], s[{S_WA}:{S_WA+1}]")
    A(f"s_cselect_b64 s[64:65], s[{S_WV}:{S_WV+1}], s[{S_WU}:{S_WU+1}]")

    def dma(T):
        A(f"s_mov_b32 m0, s57")
        A(f"s_add_u32 s57, s57, 8192")
        A.vmem(f"buffer_load_dwordx4 v{VX0}, s[28:31], s56 offen lds", f"x{T}")
        A.vmem(f"buffer_load_dwordx4 v{VX1}, s[28:31], s56 offen offset:1024 lds", f"x{T}")
        A(f"s_add_u32 s56, s56, 8192")

    dma(0)
    A("v_mov_b32 v16, s58")
    A("v_mov_b32 v17, s59")
    A("v_mov_b32 v18, s64")
    A("v_mov_b32 v19, s65")
    A("v_cndmask_b32 v16, v16, v18, vcc")
    A("v_cndmask_b32 v17, v17, v19, vcc")
    A(f"v_add_co_u32 v{VA}, vcc, v16, v13")
    A("s_nop 1")
    A(f"v_addc_co_u32 v{VA+1}, vcc, 0, v17, vcc")

    def wload(s):
        base = WB + 16 * (s + 1)
        for j in range(8):
            A.vmem(f"global_load_dwordx2 {vr(base + 2*j, 2)}, {vr(VA,2)}, off offset:{512*j}", f"w{s}")
        if s < 7:
            A(f"v_lshl_add_u64 {vr(VA,2)}, {vr(VA,2)}, 0, s[62:63]")

    wload(0)
    for T in range(1, P):
        dma(T)
    for s in range(1, 6):
        wload(s)
    srd(A, 32, S_WS, S_WS + 1, WS_BYTES)
    A("v_xor_b32 v13, v12, v11")
    A("v_lshlrev_b32 v14, 9, v11")
    for k in range(4):
        A(f"v_xor_b32 v16, {4*k}, v13")
        A(f"v_lshl_add_u32 v{VR+k}, v16, 4, v14")
    A(f"v_lshlrev_b32 v{VST}, 7, v11")
    A(f"v_lshl_add_u32 v{VST}, v12, 4, v{VST}")
    A(f"s_mul_i32 s66, s54, {SS}")
    A("s_mul_i32 s67, s52, 160*128")
    A("s_add_u32 s66, s66, s67")
    A(f"s_add_u32 s67, s66, {OFF_AU}")
    A("s_cmp_lt_u32 s53, 2")
    A("s_cselect_b32 s66, s66, s67")
    A(f"s_mov_b32 s68, {hex(NLOG2E)}")
    A("s_mov_b32 s70, 0x05040100")
    A("s_mov_b32 s71, 0x07060302")
    A(f"v_mov_b32 v29, {hex(f32(2.0**-30))}")
    A(f"v_mov_b32 v{VMAX}, 0")
    A.wait(vm=f"x{P-1}")
    A("s_barrier")
    wload(6)
    wload(7)
    nxt = P

    order = [(T, s) for s in range(8) for T in range(P)] + [(T, s) for T in range(P, NT) for s in range(8)]
    rd_pos = [0]
    bumped = [False]
    avail = [P]

    def xread():
        i = rd_pos[0]
        if i >= len(order):
            return False
        T, s = order[i]
        if T >= avail[0]:
            return False
        off = T * 8192 + (256 if s >= 4 else 0)
        if T >= 8:
            if not bumped[0]:
                for k in range(4):
                    A(f"v_add_u32 v{VR+k}, 0x10000, v{VR+k}")
                bumped[0] = True
            off -= 65536
        A.lds(f"ds_read_b128 {vr(XF + 4*(i % 4), 4)}, v{VR + (s & 3)} offset:{off}", f"f{i}")
        rd_pos[0] += 1
        return True

    def perms(s):
        raw = WB + 16 * (s + 1)
        dst = WB + 16 * s
        ops = []
        for t in range(4):
            for m in range(4):
                ops.append(f"v_perm_b32 v{dst + 4*t + m}, v{raw + 2*(2*m+1) + t//2}, v{raw + 2*(2*m) + t//2}, s{70 + (t & 1)}")
        return ops

    def epilogue(T, aset):
        a = lambda t, r: ACC + 16 * aset + 4 * t + r
        ops = []
        for t in range(4):
            for h in range(2):
                ops.append(f"v_fma_f32 v{a(t,h)}, v{a(t,h)}, s68, v29")
        ops.append(f"v_cvt_pk_bf16_f32 v{CV}, v{a(0,2)}, v{a(0,3)}")
        ops.append(f"v_cvt_pk_bf16_f32 v{CV+1}, v{a(2,2)}, v{a(2,3)}")
        for t in range(4):
            ops.append(f"v_max3_f32 v{VMAX}, abs(v{a(t,0)}), abs(v{a(t,1)}), v{VMAX}")
        for h in range(2):
            for pr in range(2):
                t0, t1 = 2 * pr, 2 * pr + 1
                ops.append(f"v_sub_u32_sdwa v{T0}, v{CV+pr}, v{a(t0,h)} dst_sel:DWORD dst_unused:UNUSED_PAD src0_sel:WORD_{h} src1_sel:WORD_0")
                ops.append(f"v_sub_u32_sdwa v{T1}, v{a(t1,2+h)}, v{a(t1,h)} dst_sel:DWORD dst_unused:UNUSED_PAD src0_sel:WORD_1 src1_sel:WORD_0")
                ops.append(f"v_add_u32_sdwa v{OUT+4*h+t0}, v{a(t0,h)}, sext(v{T0}) dst_sel:DWORD dst_unused:UNUSED_PAD src0_sel:DWORD src1_sel:WORD_0")
                ops.append(f"v_add_u32_sdwa v{OUT+4*h+t1}, v{a(t1,h)}, sext(v{T1}) dst_sel:DWORD dst_unused:UNUSED_PAD src0_sel:DWORD src1_sel:WORD_0")
            off = (T % 2) * 2048 + h * 64
            ops.append(("st", f"buffer_store_dwordx4 {vr(OUT+4*h,4)}, v{VST}, s[32:35], s66 offen offset:{off} {CFG['st1']}"))
        if T % 2 == 1:
            ops.append("s_add_u32 s66, s66, 4096")
        return ops

    def emit_op(op):
        if isinstance(op, tuple):
            A.vmem(op[1], "st")
        else:
            A(op)

    for _ in range(3):
        xread()
    i = 0
    for s in range(8):
        A.wait(vm=f"w{s}")
        for op in perms(s):
            A(op)
        if s >= 1 and nxt < NT:
            dma(nxt)
            nxt += 1
        else:
            A("s_nop 1")
        for T in range(P):
            A.wait(lg=f"f{i}")
            for t in range(4):
                c = "0" if s == 0 else vr(ACC + 16*T + 4*t, 4)
                A(f"v_mfma_f32_16x16x32_bf16 {vr(ACC + 16*T + 4*t, 4)}, {vr(WB + 16*s + 4*t, 4)}, {vr(XF + 4*(i % 4), 4)}, {c}")
                if t == 0:
                    xread()
            i += 1
    while nxt < NT:
        dma(nxt)
        nxt += 1
    bar_at = {P: min(P + 3, NT), P + 3: NT}
    free_sets = [s for s in range(P, 4)]
    fill = []
    pending = [(T, T) for T in range(P)]
    last_mfma_n = {T: A.n for T in range(P)}

    def refill():
        while pending and len(fill) < 8:
            T, st = pending[0]
            if A.n - last_mfma_n[T] < 9:
                break
            pending.pop(0)
            ops = epilogue(T, st)
            for k, op in enumerate(ops):
                fill.append((op, st if k == len(ops) - 1 else None))

    def do_fill(nmax):
        k = 0
        while k < nmax:
            refill()
            if not fill:
                break
            op, rel = fill.pop(0)
            emit_op(op)
            if rel is not None:
                free_sets.append(rel)
            k += 1

    for T in range(P, NT):
        if T in bar_at:
            if T == P:
                A("s_nop 7")
                do_fill(34)
            A.wait(vm=f"x{bar_at[T]-1}")
            A("s_barrier")
            avail[0] = bar_at[T]
            while rd_pos[0] - i < 3 and xread():
                pass
        while not free_sets:
            do_fill(4)
        st = free_sets.pop(0)
        for s in range(8):
            A.wait(lg=f"f{i}")
            for t in range(4):
                c = "0" if s == 0 else vr(ACC + 16*st + 4*t, 4)
                A(f"v_mfma_f32_16x16x32_bf16 {vr(ACC + 16*st + 4*t, 4)}, {vr(WB + 16*s + 4*t, 4)}, {vr(XF + 4*(i % 4), 4)}, {c}")
                if t == 0:
                    xread()
                    do_fill(1)
                else:
                    do_fill(2)
            i += 1
        last_mfma_n[T] = A.n
        pending.append((T, st))
    while pending or fill:
        if not fill and A.n - last_mfma_n[pending[0][0]] < 9:
            A("s_nop 7")
            last_mfma_n[pending[0][0]] -= 9
        do_fill(100)
    A("s_cmp_lt_u32 s53, 2")
    A("s_cbranch_scc1 K1_end")
    A(f"v_cmp_nge_f32 vcc, {hex(f32(60.0))}, v{VMAX}")
    A("s_lshl_b32 s55, s54, 8")
    A("s_lshl_b32 s67, s52, 2")
    A("s_add_u32 s55, s55, s67")
    A(f"s_add_u32 s55, s55, {OFF_FL}")
    A("s_or_b32 s67, vcc_lo, vcc_hi")
    A("v_mov_b32 v1, 0")
    A("v_mov_b32 v16, s67")
    A("s_mov_b64 exec, 1")
    A("buffer_store_dword v16, v1, s[32:35], s55 offen")
    A("s_endpgm")

    A.vm, A.lg = [], []
    A.label("K1_helper")
    A("v_mul_u32_u24 v1, 40, v0")
    A("v_mul_u32_u24 v2, 20, v0")
    A("s_mul_i32 s56, s2, 2560")
    A("s_mul_i32 s57, s2, 1280")
    A("v_lshlrev_b32 v3, 2, v0")
    A("v_mov_b32 v4, 0")
    A("v_mov_b32 v5, 1")
    A(f"v_add_u32 v6, {LDS_CNT}, v3")
    A("s_waitcnt lgkmcnt(0)")
    srd(A, 32, S_WS, S_WS + 1, WS_BYTES)
    A("v_lshlrev_b32 v7, 10, v0")
    A("s_lshl_b32 s58, s2, 2")
    A(f"s_add_u32 s58, s58, {OFF_ENDS}")
    A("s_cmp_lt_u32 s2, 250")
    A("s_cbranch_scc1 K1_h2")
    A("s_mov_b32 exec_hi, 0")
    A("buffer_store_dword v4, v7, s[32:35], s58 offen")
    A("s_endpgm")
    A.label("K1_h2")
    srd(A, 40, S_DST, S_DST + 1, 640000)
    srd(A, 36, S_SRC, S_SRC + 1, 640000)
    srd(A, 44, S_E, S_E + 1, 320000)
    srd(A, 48, S_DBG, S_DBG + 1, 256)
    D, S, E, RK, W0 = 16, 26, 36, 42, 52//2*2
    A.vmem(f"buffer_load_dwordx4 {vr(D,4)}, v1, s[40:43], s56 offen", "d")
    A.vmem(f"buffer_load_dwordx4 {vr(D+4,4)}, v1, s[40:43], s56 offen offset:16", "d")
    A.vmem(f"buffer_load_dwordx2 {vr(D+8,2)}, v1, s[40:43], s56 offen offset:32", "d")
    A.vmem(f"buffer_load_dwordx4 {vr(S,4)}, v1, s[36:39], s56 offen", "s")
    A.vmem(f"buffer_load_dwordx4 {vr(S+4,4)}, v1, s[36:39], s56 offen offset:16", "s")
    A.vmem(f"buffer_load_dwordx2 {vr(S+8,2)}, v1, s[36:39], s56 offen offset:32", "s")
    A.vmem(f"buffer_load_dwordx4 {vr(E,4)}, v2, s[44:47], s57 offen", "s")
    A.vmem(f"buffer_load_dword {vr(E+4)}, v2, s[44:47], s57 offen offset:16", "s")
    A.lds("ds_write_b32 v6, v4")
    A("s_cmp_ge_u32 s2, 8")
    A("s_cbranch_scc1 K1_h3")
    A(f"s_mul_i32 s59, s2, {SS}")
    A(f"s_add_u32 s59, s59, {DUMMY_ROW*128}")
    A("v_mov_b32 v8, 0x44800000")
    A("s_mov_b32 exec_hi, 0")
    A("buffer_store_dword v8, v3, s[32:35], s59 offen")
    A("s_mov_b64 exec, -1")
    A.label("K1_h3")
    A("s_barrier")
    A("s_waitcnt vmcnt(5)")
    BN = 72
    for k in range(10):
        A(f"v_and_b32 v{BN+k}, 31, v{D+k}")
        A(f"v_lshlrev_b32 v{BN+k}, 2, v{BN+k}")
        A(f"v_add_u32 v{BN+k}, {LDS_CNT}, v{BN+k}")
        A(f"ds_add_rtn_u32 v{RK+k}, v{BN+k}, v5")
    A("ds_read_b32 v8, v6")
    A("s_and_b32 s59, s2, 1")
    A("s_lshl_b32 s60, s59, 7")
    A(f"s_mul_i32 s59, s59, {HALF}")
    A(f"s_add_u32 s59, s59, {OFF_BINS}")
    A(f"s_mov_b32 s61, {BINSTRIDE}")
    A("v_mul_lo_u32 v10, v0, s61")
    A("v_add_u32 v10, s59, v10")
    A("s_waitcnt lgkmcnt(0)")
    A("v_mov_b32 v9, v8")
    A("s_mov_b32 exec_hi, 0")
    A("buffer_atomic_add v9, v3, s[48:51], s60 offen sc0")
    A("s_mov_b64 exec, -1")
    A("s_mov_b32 s61, 0xffff0000")
    A("s_waitcnt vmcnt(1)")
    for k in range(10):
        if k % 2 == 0:
            A(f"v_lshl_or_b32 v{W0+2*k}, v{E+k//2}, 16, v{S+k}")
        else:
            A(f"v_and_or_b32 v{W0+2*k}, v{E+k//2}, s61, v{S+k}")
        A(f"v_lshrrev_b32 v{W0+2*k+1}, 5, v{D+k}")
        A(f"v_lshlrev_b32 v{W0+2*k+1}, 2, v{W0+2*k+1}")
    A("s_barrier")
    A("s_barrier")
    A("s_waitcnt vmcnt(0)")
    A("v_add_u32 v8, v8, v9")
    A("v_lshl_add_u32 v10, v9, 3, v10")
    A("ds_write_b32 v6, v10")
    A("s_mov_b32 exec_hi, 0")
    A("buffer_store_dword v8, v7, s[32:35], s58 offen")
    A("s_mov_b64 exec, -1")
    for k in range(10):
        A(f"ds_read_b32 v{D+k}, v{BN+k}")
    for k in range(10):
        A(f"s_waitcnt lgkmcnt({9-k})")
        A(f"v_lshl_add_u32 v{D+k}, v{RK+k}, 3, v{D+k}")
        A(f"buffer_store_dwordx2 {vr(W0+2*k,2)}, v{D+k}, s[32:35], 0 offen")
    A.label("K1_end")
    A("s_endpgm")
    A.label("K1_code_end")


def gen_k2(A):
    NB = CFG["NB"]
    STR = 49 * 4
    CAP = 48
    L_DEG = 0
    L_CUR = 1536
    L_FLAG = 1792
    L_CNT = 2048
    L_SORT = 6144
    L_ELL = 8192
    LDS_TOTAL = L_ELL + 65536
    A.vm, A.lg = [], []
    A.label(K2)
    A("s_getpc_b64 s[60:61]")
    A("s_load_dwordx16 s[4:19], s[0:1], 0")
    A("s_load_dwordx8 s[20:27], s[0:1], 64")
    A("s_cmp_ge_u32 s2, 256")
    A("s_cbranch_scc1 K2_end")
    A("v_lshlrev_b32 v1, 6, v0")
    A("v_min_u32 v1, K2_CODE_LIM, v1")
    PF = 127
    A.vmem(f"global_load_dword v{PF}, v1, s[60:61]", "pf")
    A("v_lshrrev_b32 v1, 6, v0")
    A("v_and_b32 v2, 63, v0")
    A("v_readfirstlane_b32 s3, v1")
    A("s_and_b32 s52, s2, 7")
    A("s_lshr_b32 s53, s2, 3")
    A("v_lshlrev_b32 v3, 4, v0")
    A(f"v_mov_b32 v4, {DUMMY_ROW}")
    A(f"v_mov_b32 v5, {DUMMY_ROW}")
    A(f"v_mov_b32 v6, {DUMMY_ROW}")
    A(f"v_mov_b32 v7, {DUMMY_ROW}")
    A("v_mov_b32 v8, 0")
    A("v_mov_b32 v9, 0")
    A("v_lshlrev_b32 v10, 3, v0")
    A("v_and_b32 v11, 511, v0")
    A("v_lshlrev_b32 v12, 4, v11")
    A("s_lshr_b32 s54, s3, 3")
    A(f"s_mul_i32 s55, s53, {BINSTRIDE}")
    A(f"s_mul_i32 s56, s54, {HALF}")
    A("s_add_u32 s55, s55, s56")
    A(f"s_add_u32 s55, s55, {OFF_BINS}")
    A("s_add_u32 s56, s55, 8192")
    A("s_add_u32 s57, s55, 16384")
    A("s_lshl_b32 s58, s53, 10")
    A(f"s_add_u32 s58, s58, {OFF_ENDS}")
    A("s_lshl_b32 s59, s52, 8")
    A(f"s_add_u32 s59, s59, {OFF_FL}")
    A("v_lshlrev_b32 v13, 4, v2")
    A("v_lshlrev_b32 v14, 2, v2")
    A("s_waitcnt lgkmcnt(0)")
    srd(A, 32, S_WS, S_WS + 1, WS_BYTES)
    EN = 16
    ENDS = 28
    FLG = 32
    A.vmem(f"buffer_load_dwordx4 {vr(ENDS,4)}, v13, s[32:35], s58 offen", "ends")
    A.vmem(f"buffer_load_dwordx4 {vr(EN,4)}, v12, s[32:35], s55 offen", "e0")
    A.vmem(f"buffer_load_dwordx4 {vr(EN+4,4)}, v12, s[32:35], s56 offen", "e1")
    A("s_and_b32 s62, s3, 7")
    A("s_cmp_lt_u32 s62, 6")
    A("s_cselect_b32 s57, s57, s55")
    A.vmem(f"buffer_load_dwordx4 {vr(EN+8,4)}, v12, s[32:35], s57 offen", "e2")
    A.vmem(f"buffer_load_dword v{FLG}, v14, s[32:35], s59 offen", "fl")
    A(f"s_mul_i32 s62, s52, {SS}")
    A(f"s_add_u32 s36, s{S_WS}, s62")
    A(f"s_addc_u32 s37, s{S_WS+1}, 0")
    A(f"s_add_u32 s40, s36, {OFF_AU}")
    A(f"s_addc_u32 s41, s37, 0")
    A(f"s_or_b32 s37, s37, {hex(128 << 16)}")
    A(f"s_mov_b32 s38, {ROWS}")
    A("s_mov_b32 s39, 0x00020000")
    A(f"s_mov_b32 s42, {SS}")
    A("s_mov_b32 s43, 0x00020000")
    srd(A, 44, S_WC, S_WC + 1, 512)
    SUB8 = 15
    A(f"v_and_b32 v{SUB8}, 7, v2")
    A(f"v_lshlrev_b32 v{SUB8}, 3, v{SUB8}")
    A("s_lshl_b32 s63, s52, 6")
    WCR = 34
    A.vmem(f"buffer_load_dwordx2 {vr(WCR,2)}, v{SUB8}, s[44:47], s63 offen", "wc")
    A("s_mul_i32 s64, s53, 40960")
    A("s_add_u32 s64, s64, s62")
    A("v_min_u32 v33, 639, v0")
    A("v_lshlrev_b32 v33, 6, v33")
    A.vmem(f"buffer_load_dword v{PF-1}, v33, s[32:35], s64 offen", "bvpf")
    for k in range(4):
        A.lds(f"ds_write_b128 v3, v[4:7] offset:{L_ELL + 16384*k}")
    A.lds("ds_write_b64 v10, v[8:9]")
    srd(A, 44, S_X, S_X + 1, 10000 * 512)
    srd(A, 48, S_OUT, S_OUT + 1, 10000 * 512)
    A.wait(vm="ends")
    A("s_cmp_eq_u32 s54, 0")
    A("s_cselect_b64 vcc, -1, 0")
    A(f"v_max_u32 v36, v{ENDS}, v{ENDS+2}")
    A(f"v_max_u32 v37, v{ENDS+1}, v{ENDS+3}")
    A("v_max_u32 v38, v36, v37")
    A("v_cndmask_b32 v36, v37, v36, vcc")
    A("s_nop 0")
    for dpp in ["row_shr:1", "row_shr:2", "row_shr:4", "row_shr:8", "row_bcast:15 row_mask:0xa", "row_bcast:31 row_mask:0xc"]:
        rm = "" if "row_mask" in dpp else " row_mask:0xf"
        A("s_nop 0")
        A(f"v_max_u32_dpp v36, v36, v36 {dpp}{rm} bank_mask:0xf")
        A(f"v_max_u32_dpp v38, v38, v38 {dpp}{rm} bank_mask:0xf")
    A("v_lshlrev_b32 v39, 1, v11")
    A("v_readlane_b32 s65, v36, 63")
    A("v_readlane_b32 s66, v38, 63")
    A("v_and_b32 v40, 15, v2")
    A(f"v_lshlrev_b32 v40, 2, v40")
    A("v_mov_b32 v41, 1")
    A("s_and_b32 s62, s3, 7")
    A("s_cmp_lt_u32 s62, 6")
    A("s_cselect_b32 s67, s65, 0")
    for k in range(6):
        i, o = k // 2, k % 2
        cnt = "s67" if i == 2 else "s65"
        A(f"v_add_u32 v42, {1024*i + o}, v39")
        A(f"v_cmp_gt_u32 s[{70+2*k}:{71+2*k}], {cnt}, v42")
    A("s_waitcnt lgkmcnt(0)")
    A("s_barrier")
    RK = 44
    EA_ = 50
    for k in range(6):
        if k % 2 == 0:
            A.wait(vm=f"e{k//2}")
        A(f"s_mov_b64 exec, s[{70+2*k}:{71+2*k}]")
        A(f"ds_add_rtn_u32 v{RK+k}, v{EN+2*k+1}, v41 offset:{L_DEG}")
    A("s_mov_b64 exec, -1")
    for k in range(6):
        A(f"v_mul_u32_u24 v{EA_+k}, 49, v{EN+2*k+1}")
    A("s_waitcnt lgkmcnt(0)")
    for k in range(6):
        A(f"v_min_u32 v{RK+k}, {CAP}, v{RK+k}")
        A(f"v_lshl_add_u32 v{EA_+k}, v{RK+k}, 2, v{EA_+k}")
        A(f"v_lshl_add_u32 v{RK+k}, v{RK+k}, 6, v40")
        A(f"s_mov_b64 exec, s[{70+2*k}:{71+2*k}]")
        A(f"ds_write_b32 v{EA_+k}, v{EN+2*k} offset:{L_ELL}")
        A(f"ds_add_u32 v{RK+k}, v41 offset:{L_CNT}")
        A("s_mov_b64 exec, -1")
    WC = 56
    A.wait(vm="wc")
    A(f"v_lshlrev_b32 v{WC}, 16, v{WCR}")
    A(f"v_and_b32 v{WC+1}, 0xffff0000, v{WCR}")
    A(f"v_lshlrev_b32 v{WC+2}, 16, v{WCR+1}")
    A(f"v_and_b32 v{WC+3}, 0xffff0000, v{WCR+1}")
    for k in range(4):
        A(f"v_mul_f32 v{WC+k}, {hex(NLOG2E)}, v{WC+k}")
    A(f"v_cmp_ne_u32 vcc, 0, v{FLG}")
    A("s_waitcnt lgkmcnt(0)")
    A("s_barrier")
    A("s_cbranch_vccnz K2_slow")
    A("s_cmp_gt_u32 s66, 2816")
    A("s_cbranch_scc1 K2_slow")
    A("s_cmp_ge_u32 s3, 5")
    A("s_cbranch_scc1 K2_sorted")
    A("v_lshlrev_b32 v16, 2, v0")
    A(f"ds_read_b32 v17, v16 offset:{L_DEG}")
    A("s_waitcnt lgkmcnt(0)")
    A(f"v_cmp_lt_u32 vcc, {CAP}, v17")
    A(f"v_min_u32 v17, {CAP}, v17")
    A("v_lshlrev_b32 v18, 6, v17")
    A("v_lshlrev_b32 v19, 2, v17")
    for k in range(4):
        A(f"ds_read_b128 {vr(20+4*k,4)}, v18 offset:{L_CNT + 16*k}")
    A(f"ds_add_rtn_u32 v36, v19, v41 offset:{L_CUR}")
    A("s_cbranch_vccz K2_noovf")
    A("v_mov_b32 v37, 0")
    A(f"ds_write_b32 v37, v41 offset:{L_FLAG}")
    A.label("K2_noovf")
    A("v_lshl_or_b32 v17, v17, 16, v0")
    A("s_waitcnt lgkmcnt(0)")
    A("v_add3_u32 v20, v20, v21, v22")
    A("v_add3_u32 v23, v23, v24, v25")
    A("v_add3_u32 v26, v26, v27, v28")
    A("v_add3_u32 v29, v29, v30, v31")
    A("v_add3_u32 v32, v32, v33, v34")
    A("v_add3_u32 v20, v20, v23, v26")
    A("v_add3_u32 v29, v29, v32, v35")
    A("v_add3_u32 v20, v20, v29, v36")
    A("v_min_u32 v20, 319, v20")
    A("v_lshlrev_b32 v20, 2, v20")
    A(f"ds_write_b32 v20, v17 offset:{L_SORT}")
    A("s_waitcnt lgkmcnt(0)")
    A.label("K2_sorted")
    rounds = [(0, 4, 15), (1, 2, 15), (3, 7, 9), (5, 6, 8)]
    packed = 0
    A("s_lshr_b32 s62, s3, 2")
    A("s_lshl_b32 s62, s62, 2")
    A("s_and_b32 s64, s3, 3")
    A("s_sub_u32 s67, 3, s64")
    CH = [70, 71, 72]
    for j in range(3):
        c = sum(rounds[l][j] << (4 * l) for l in range(4))
        A(f"s_lshr_b32 s{CH[j]}, {hex(c)}, s62")
        A(f"s_and_b32 s{CH[j]}, s{CH[j]}, 15")
        A(f"s_bitcmp1_b32 s{CH[j]}, 0")
        A("s_cselect_b32 s68, s67, s64")
        A(f"s_lshl_b32 s{CH[j]}, s{CH[j]}, 2")
        A(f"s_add_u32 s{CH[j]}, s{CH[j]}, s68")
        A(f"s_lshl_b32 s{CH[j]}, s{CH[j]}, 5")
    A("v_lshrrev_b32 v16, 3, v2")
    A("v_lshlrev_b32 v16, 2, v16")
    for j in range(3):
        A(f"v_add_u32 v{17+j}, s{CH[j]}, v16")
    A("v_mov_b32 v20, 0")
    A("s_barrier")
    LOC = 60
    for j in range(3):
        A(f"ds_read_b32 v{LOC+j}, v{17+j} offset:{L_SORT}")
    A(f"ds_read_b32 v20, v20 offset:{L_FLAG}")
    G = 64
    IX = G + 8 * NB
    EE = IX + 4
    assert EE % 2 == 0
    EA = EE + 2 * NB + (0 if (EE + 2 * NB) % 2 == 0 else 1)
    DEN = EA + 4
    NUM = DEN + 4
    AUC = NUM + 4
    AUN = AUC + 4
    XR = AUN + 4
    assert XR + 2 <= PF - 1
    U0, U1 = 16, 20
    V0, V1 = 24, 28
    M, S_, W_ = 32, 36, 40
    PA = 44
    PN1, PN2 = 45, 46
    OA = 47
    DUMP = 48
    SUB16 = 49
    A(f"v_lshlrev_b32 v{SUB16}, 1, v{SUB8}")
    A(f"v_mov_b32 v{IX+1}, v{SUB16}")
    A(f"v_mov_b32 v{IX+3}, v{SUB16}")
    A(f"v_mov_b32 v{DUMP}, {L_ELL + 322*STR}")
    for k in range(2 * NB):
        A(f"v_mov_b32 v{EE+k}, 0")
    A(f"s_mov_b32 s82, {hex(f32(2.0**-50))}")
    A(f"s_mov_b32 s83, {hex(f32(2.0**-50))}")
    A(f"s_mov_b32 s84, {hex(f32(1e-6 * 2.0**50))}")
    A(f"s_mov_b32 s85, {hex(f32(1e-6 * 2.0**50))}")
    A("s_lshl_b32 s86, s53, 7")
    A("s_lshl_b32 s87, s53, 9")
    A("s_add_u32 s87, s87, s63")
    A("s_waitcnt lgkmcnt(0)")
    A("v_cmp_ne_u32 vcc, 0, v20")
    for j in range(3):
        A(f"v_readfirstlane_b32 s{73+j}, v{LOC+j}")
    for j in range(3):
        A(f"v_and_b32 v{LOC+j}, 0xffff, v{LOC+j}")
    A("s_cbranch_vccnz K2_slow")
    A(f"v_mov_b32 v{OA}, {L_ELL}")
    A(f"s_movk_i32 s62, {STR}")
    A(f"v_mad_u32_u24 v{PA}, v{LOC}, s62, v{OA}")
    A(f"v_mad_u32_u24 v{PN1}, v{LOC+1}, s62, v{OA}")
    A(f"v_mad_u32_u24 v{PN2}, v{LOC+2}, s62, v{OA}")
    for j in range(3):
        A(f"s_add_u32 s{73+j}, s{73+j}, 0x10000")
        A(f"s_lshr_b32 s{73+j}, s{73+j}, 17")
        A(f"s_max_u32 s{73+j}, s{73+j}, {NB+1}")
        A(f"s_sub_u32 s{73+j}, s{73+j}, 1")
    A("s_cmp_lt_u32 s3, 8")
    A("s_cselect_b32 s79, 1, 2")
    A("s_cselect_b32 s78, 0x7fff, s75")
    A("s_cbranch_scc0 K2_three")
    A(f"v_mov_b32 v{PN2}, v{DUMP}")
    A.label("K2_three")
    SP, SP1, SP2 = 76, 77, 78
    SC, SC1, SC2 = 73, 74, 75
    A(f"s_sub_u32 s{SP}, s73, {NB}")
    A(f"s_mov_b32 s{SP1}, s74")
    A(f"v_lshl_add_u32 v{OA}, v{LOC}, 12, v{SUB16}")
    A(f"buffer_load_dwordx4 {vr(AUC,4)}, v{OA}, s[40:43], s86 offen")

    def E_(off):
        A(f"ds_read_u16 v{IX}, v{PA} offset:{off}")
        A(f"ds_read_u16 v{IX+2}, v{PA} offset:{off+4}")

    def F_(b, off):
        A(f"ds_read_u16_d16_hi v{EE+2*b}, v{PA} offset:{off+2}")
        A(f"ds_read_u16_d16_hi v{EE+2*b+1}, v{PA} offset:{off+6}")

    def G_(b):
        A(f"buffer_load_dwordx4 {vr(G+8*b,4)}, {vr(IX,2)}, s[36:39], 0 idxen offen")
        A(f"buffer_load_dwordx4 {vr(G+8*b+4,4)}, {vr(IX+2,2)}, s[36:39], 0 idxen offen")

    sw_blocks = []

    LP0, LP1, LP2 = 50, 51, 52
    for j in range(3):
        A(f"v_mov_b32 v{LP0+j}, v{LOC+j}")

    def adv(tag, u):
        A(f"s_sub_u32 s{SP}, s{SP}, 1")
        A(f"s_cbranch_scc1 K2_sw_{tag}")
        A.label(f"K2_swr_{tag}")
        sw_blocks.append((tag, u))

    E_(0)
    for b in range(NB):
        A("s_waitcnt lgkmcnt(0)")
        G_(b)
        F_(b, 8 * b)
        E_(8 * (b + 1))
    A(f"v_add_u32 v{PA}, {8*NB}, v{PA}")
    for k in range(0, 4, 2):
        A(f"v_mov_b64 {vr(DEN+k,2)}, s[84:85]")
        A(f"v_mov_b64 {vr(NUM+k,2)}, 0")
    A(f"s_waitcnt vmcnt({2*NB})")
    for k in range(4):
        A(f"v_add_f32 v{EA+k}, {hex(f32(-50.0))}, v{AUC+k}")
    for k in range(4):
        A(f"v_exp_f32 v{EA+k}, v{EA+k}")
    fl_blocks = []
    A.label("K2_loop")
    for b in range(NB):
        g0, g1 = G + 8 * b, G + 8 * b + 4
        e = vr(EE + 2 * b, 2)
        A(f"s_waitcnt vmcnt({2*(NB-1)}) lgkmcnt(0)")
        for k in (0, 2):
            A(f"v_pk_fma_f32 {vr(U0+k,2)}, {e}, {vr(WC+k,2)}, {vr(g0+k,2)} op_sel_hi:[0,1,1]")
        for k in (0, 2):
            A(f"v_pk_fma_f32 {vr(U1+k,2)}, {e}, {vr(WC+k,2)}, {vr(g1+k,2)} op_sel:[1,0,0] op_sel_hi:[1,1,1]")
        for k in (0, 2):
            A(f"v_lshlrev_b64 {vr(V0+k,2)}, 16, {vr(g0+k,2)}")
            A(f"v_lshlrev_b64 {vr(V1+k,2)}, 16, {vr(g1+k,2)}")
        G_(b)
        F_(b, 8 * b)
        adv(f"l{b}", b)
        E_(8 * (b + 1))
        if b == NB - 1:
            A(f"v_add_u32 v{PA}, {8*NB}, v{PA}")
        for k in range(4):
            A(f"v_exp_f32 v{U0+k}, v{U0+k}")
        for k in range(4):
            A(f"v_exp_f32 v{U1+k}, v{U1+k}")
        for k in (0, 2):
            A(f"v_pk_fma_f32 {vr(U0+k,2)}, {vr(U0+k,2)}, {vr(EA+k,2)}, s[82:83] clamp")
        for k in (0, 2):
            A(f"v_pk_fma_f32 {vr(U1+k,2)}, {vr(U1+k,2)}, {vr(EA+k,2)}, s[82:83] clamp")
        for k in (0, 2):
            A(f"v_pk_mul_f32 {vr(M+k,2)}, {vr(U0+k,2)}, {vr(U1+k,2)}")
        for k in range(4):
            A(f"v_rcp_f32 v{M+k}, v{M+k}")
        for k in (0, 2):
            A(f"v_pk_add_f32 {vr(S_+k,2)}, {vr(U0+k,2)}, {vr(U1+k,2)}")
        for k in (0, 2):
            A(f"v_pk_mul_f32 {vr(W_+k,2)}, {vr(U1+k,2)}, {vr(V0+k,2)}")
        for k in (0, 2):
            A(f"v_pk_fma_f32 {vr(W_+k,2)}, {vr(U0+k,2)}, {vr(V1+k,2)}, {vr(W_+k,2)}")
        for k in (0, 2):
            A(f"v_pk_fma_f32 {vr(DEN+k,2)}, {vr(M+k,2)}, {vr(S_+k,2)}, {vr(DEN+k,2)}")
        A(f"s_sub_u32 s{SC}, s{SC}, 1")
        for k in (0, 2):
            A(f"v_pk_fma_f32 {vr(NUM+k,2)}, {vr(M+k,2)}, {vr(W_+k,2)}, {vr(NUM+k,2)}")
        A(f"s_cbranch_scc1 K2_fl_{b}")
        A.label(f"K2_flr_{b}")
        fl_blocks.append(b)
    A("s_branch K2_loop")

    for tag, u in sw_blocks:
        A.label(f"K2_sw_{tag}")
        A(f"v_subrev_u32 v{PA}, {8*(u+1)}, v{PN1}")
        A(f"v_mov_b32 v{PN1}, v{PN2}")
        A(f"v_mov_b32 v{PN2}, v{DUMP}")
        A(f"v_lshl_add_u32 v{OA}, v{LP0}, 14, v{SUB8}")
        A(f"buffer_load_dwordx2 {vr(XR,2)}, v{OA}, s[44:47], s87 offen")
        A(f"v_lshl_add_u32 v{OA}, v{LP1}, 12, v{SUB16}")
        A(f"buffer_load_dwordx4 {vr(AUN,4)}, v{OA}, s[40:43], s86 offen")
        A(f"v_mov_b32 v{LP0}, v{LP1}")
        A(f"v_mov_b32 v{LP1}, v{LP2}")
        A(f"s_mov_b32 s{SP}, s{SP1}")
        A(f"s_mov_b32 s{SP1}, s{SP2}")
        A(f"s_movk_i32 s{SP2}, 0x7fff")
        A(f"s_branch K2_swr_{tag}")

    for b in fl_blocks:
        A.label(f"K2_fl_{b}")
        for k in range(4):
            A(f"v_rcp_f32 v{DEN+k}, v{DEN+k}")
        for k in (0, 2):
            A(f"v_lshlrev_b64 {vr(V0+k,2)}, 16, {vr(AUC+k,2)}")
        A(f"s_waitcnt vmcnt({2*NB})")
        A(f"v_lshlrev_b32 v{V1}, 16, v{XR}")
        A(f"v_and_b32 v{V1+1}, 0xffff0000, v{XR}")
        A(f"v_lshlrev_b32 v{V1+2}, 16, v{XR+1}")
        A(f"v_and_b32 v{V1+3}, 0xffff0000, v{XR+1}")
        for k in (0, 2):
            A(f"v_pk_fma_f32 {vr(V0+k,2)}, {vr(NUM+k,2)}, {vr(DEN+k,2)}, {vr(V0+k,2)}")
        for k in range(4):
            A(f"v_max_f32 v{V0+k}, 0, v{V0+k}")
        for k in (0, 2):
            A(f"v_pk_add_f32 {vr(V0+k,2)}, {vr(V0+k,2)}, {vr(V1+k,2)}")
        A(f"v_cvt_pk_bf16_f32 v{V1}, v{V0}, v{V0+1}")
        A(f"v_cvt_pk_bf16_f32 v{V1+1}, v{V0+2}, v{V0+3}")
        A(f"v_lshl_add_u32 v{OA}, v{LOC}, 14, v{SUB8}")
        A(f"buffer_store_dwordx2 {vr(V1,2)}, v{OA}, s[48:51], s87 offen")
        A("s_sub_u32 s79, s79, 1")
        A("s_cbranch_scc1 K2_end")
        for k in range(4):
            A(f"v_add_f32 v{EA+k}, {hex(f32(-50.0))}, v{AUN+k}")
        for k in range(4):
            A(f"v_exp_f32 v{EA+k}, v{EA+k}")
        for k in range(0, 4, 2):
            A(f"v_mov_b64 {vr(AUC+k,2)}, {vr(AUN+k,2)}")
            A(f"v_mov_b64 {vr(DEN+k,2)}, s[84:85]")
            A(f"v_mov_b64 {vr(NUM+k,2)}, 0")
        A(f"v_mov_b32 v{LOC}, v{LOC+1}")
        A(f"v_mov_b32 v{LOC+1}, v{LOC+2}")
        A(f"s_mov_b32 s{SC}, s{SC1}")
        A(f"s_mov_b32 s{SC1}, s{SC2}")
        A(f"s_branch K2_flr_{b}")

    A.label("K2_slow")
    A("s_waitcnt vmcnt(0) lgkmcnt(0)")
    A(f"buffer_load_dwordx4 v[16:19], v13, s[32:35], s58 offen")
    A(f"v_lshlrev_b32 v{SUB16}, 1, v{SUB8}")
    A(f"v_mov_b32 v{IX+1}, v{SUB16}")
    A("s_lshl_b32 s86, s53, 7")
    A("s_lshl_b32 s87, s53, 9")
    A("s_add_u32 s87, s87, s63")
    A(f"s_mul_i32 s55, s53, {BINSTRIDE}")
    A(f"s_add_u32 s55, s55, {OFF_BINS}")
    A("v_lshrrev_b32 v44, 3, v2")
    A("v_lshlrev_b32 v45, 3, v2")
    A("s_waitcnt vmcnt(0)")
    A("v_max_u32 v36, v16, v18")
    A("v_max_u32 v38, v17, v19")
    A("s_nop 0")
    for dpp in ["row_shr:1", "row_shr:2", "row_shr:4", "row_shr:8", "row_bcast:15 row_mask:0xa", "row_bcast:31 row_mask:0xc"]:
        rm = "" if "row_mask" in dpp else " row_mask:0xf"
        A("s_nop 0")
        A(f"v_max_u32_dpp v36, v36, v36 {dpp}{rm} bank_mask:0xf")
        A(f"v_max_u32_dpp v38, v38, v38 {dpp}{rm} bank_mask:0xf")
    A("s_nop 0")
    A("v_readlane_b32 s65, v36, 63")
    A("v_readlane_b32 s66, v38, 63")
    A("s_mov_b32 s70, s3")
    A.label("K2_s_chunk")
    A("s_lshl_b32 s71, s70, 3")
    A(f"v_add_u32 v{LOC}, s71, v44")
    A(f"v_lshl_add_u32 v{OA}, v{LOC}, 12, v{SUB16}")
    A(f"buffer_load_dwordx4 {vr(AUC,4)}, v{OA}, s[40:43], s86 offen")
    A(f"v_lshl_add_u32 v{OA}, v{LOC}, 14, v{SUB8}")
    A(f"buffer_load_dwordx2 {vr(XR,2)}, v{OA}, s[44:47], s87 offen")
    for k in range(4):
        A(f"v_mov_b32 v{DEN+k}, {hex(f32(1e-6))}")
        A(f"v_mov_b32 v{NUM+k}, 0")
    A("s_mov_b32 s72, s55")
    A("s_mov_b32 s73, s65")
    A("s_mov_b32 s74, 0")
    A.label("K2_s_shard")
    A("s_mov_b32 s75, 0")
    A.label("K2_s_blk")
    A("s_cmp_ge_u32 s75, s73")
    A("s_cbranch_scc1 K2_s_shard_done")
    A("s_lshl_b32 s76, s75, 3")
    A("s_add_u32 s76, s76, s72")
    A("buffer_load_dwordx2 v[46:47], v45, s[32:35], s76 offen")
    A("v_add_u32 v48, s75, v2")
    A("v_cmp_gt_u32 s[78:79], s73, v48")
    A("s_waitcnt vmcnt(0)")
    A("v_lshrrev_b32 v48, 5, v47")
    A("v_cmp_eq_u32 vcc, s70, v48")
    A("s_nop 1")
    A("s_and_b64 s[78:79], s[78:79], vcc")
    A.label("K2_s_edge")
    A("s_cmp_eq_u64 s[78:79], 0")
    A("s_cbranch_scc1 K2_s_blk_done")
    A("s_ff1_i32_b64 s76, s[78:79]")
    A("s_bitset0_b64 s[78:79], s76")
    A("v_readlane_b32 s77, v46, s76")
    A("v_readlane_b32 s80, v47, s76")
    A("s_nop 3")
    A("s_and_b32 s81, s77, 0xffff")
    A("s_and_b32 s77, s77, 0xffff0000")
    A(f"v_mov_b32 v{IX}, s81")
    A("s_lshl_b32 s80, s80, 1")
    A("s_and_b32 s80, s80, 56")
    A("s_mov_b64 s[88:89], 0xff")
    A("s_lshl_b64 exec, s[88:89], s80")
    A(f"buffer_load_dwordx4 {vr(G,4)}, {vr(IX,2)}, s[36:39], 0 idxen offen")
    A("s_waitcnt vmcnt(0)")
    for k in range(4):
        A(f"v_fma_f32 v{U0+k}, s77, v{WC+k}, v{G+k}")
    for k in range(4):
        A(f"v_add_f32 v{U0+k}, v{U0+k}, v{AUC+k}")
    for k in range(4):
        A(f"v_exp_f32 v{U0+k}, v{U0+k}")
    for k in (0, 2):
        A(f"v_lshlrev_b64 {vr(V0+k,2)}, 16, {vr(G+k,2)}")
    for k in range(4):
        A(f"v_add_f32 v{U0+k}, 1.0, v{U0+k}")
    for k in range(4):
        A(f"v_rcp_f32 v{U0+k}, v{U0+k}")
    A("s_nop 0")
    for k in range(4):
        A(f"v_add_f32 v{DEN+k}, v{DEN+k}, v{U0+k}")
        A(f"v_fma_f32 v{NUM+k}, v{U0+k}, v{V0+k}, v{NUM+k}")
    A("s_mov_b64 exec, -1")
    A("s_branch K2_s_edge")
    A.label("K2_s_blk_done")
    A("s_add_u32 s75, s75, 64")
    A("s_branch K2_s_blk")
    A.label("K2_s_shard_done")
    A(f"s_add_u32 s72, s72, {HALF}")
    A("s_mov_b32 s73, s66")
    A("s_add_u32 s74, s74, 1")
    A("s_cmp_lt_u32 s74, 2")
    A("s_cbranch_scc1 K2_s_shard")
    A("s_waitcnt vmcnt(0)")
    for k in range(4):
        A(f"v_rcp_f32 v{DEN+k}, v{DEN+k}")
    for k in (0, 2):
        A(f"v_lshlrev_b64 {vr(V0+k,2)}, 16, {vr(AUC+k,2)}")
    A(f"v_lshlrev_b32 v{V1}, 16, v{XR}")
    A(f"v_and_b32 v{V1+1}, 0xffff0000, v{XR}")
    A(f"v_lshlrev_b32 v{V1+2}, 16, v{XR+1}")
    A(f"v_and_b32 v{V1+3}, 0xffff0000, v{XR+1}")
    for k in range(4):
        A(f"v_fma_f32 v{V0+k}, v{NUM+k}, v{DEN+k}, v{V0+k}")
        A(f"v_max_f32 v{V0+k}, 0, v{V0+k}")
        A(f"v_add_f32 v{V0+k}, v{V0+k}, v{V1+k}")
    A(f"v_cvt_pk_bf16_f32 v{V1}, v{V0}, v{V0+1}")
    A(f"v_cvt_pk_bf16_f32 v{V1+1}, v{V0+2}, v{V0+3}")
    A(f"v_lshl_add_u32 v48, v{LOC}, 14, v{SUB8}")
    A(f"buffer_store_dwordx2 {vr(V1,2)}, v48, s[48:51], s87 offen")
    A("s_add_u32 s70, s70, 16")
    A("s_cmp_lt_u32 s70, 40")
    A("s_cbranch_scc1 K2_s_chunk")
    A.label("K2_end")
    A("s_endpgm")
    A.label("K2_code_end")
    return LDS_TOTAL


def desc(name, vgpr, sgpr=102):
    return f""".amdhsa_kernel {name}
  .amdhsa_next_free_vgpr {vgpr}
  .amdhsa_next_free_sgpr {sgpr}
  .amdhsa_accum_offset {vgpr}
  .amdhsa_group_segment_fixed_size 0
  .amdhsa_kernarg_size 96
  .amdhsa_user_sgpr_count 2
  .amdhsa_user_sgpr_kernarg_segment_ptr 1
  .amdhsa_system_sgpr_workgroup_id_x 1
.end_amdhsa_kernel"""


def main():
    A = Asm()
    A.L.append(f".globl {K1}\n.p2align 8\n.type {K1},@function")
    gen_k1(A)
    A.L.append(f".globl {K2}\n.p2align 8\n.type {K2},@function")
    lds2 = gen_k2(A)
    hdr = open("cdna_kernels/" + NAME + ".s.ref").read().split("\n")
    head = [l for l in hdr if l.startswith(";") and "@launch" not in l]
    out = head + [
        f"; @launch kernel={K1} grid=(256,1,1) block=(320,1,1) lds={81920 + 256}",
        f"; @launch kernel={K2} grid=(256,1,1) block=(1024,1,1) lds={lds2}",
        '.amdgcn_target "amdgcn-amd-amdhsa--gfx950"',
        ".text",
        f".set K1_CODE_LIM, (K2_code_end - {K1} - 64)",
        f".set K2_CODE_LIM, (K2_code_end - {K2} - 64)",
    ] + A.L + ['.section .rodata,"a"', ".p2align 6", desc(K1, 256), ".p2align 6", desc(K2, 128), ""]
    open(sys.argv[1], "w").write("\n".join(out))


main()
```

```python
import sys, struct

NAME = "standalone__edge_featured_mpnn_gatedgcn__graph"
K1 = "gcn_prep_kernel"
K2 = "gcn_aggr_kernel"

ROWS = 10248
SS = ROWS * 128
OFF_BV = 0
OFF_AU = 8 * SS
OFF_FL = 16 * SS
OFF_ENDS = OFF_FL + 8192
OFF_BINS = 0x1500000
BINSTRIDE = 0x140000
HALF = 0xA0000
DUMMY_ROW = 10240
WS_BYTES = 0x10000000

def f32(x):
    return struct.unpack("<I", struct.pack("<f", x))[0]

NLOG2E = f32(-1.4426950408889634)
CFG = dict(P=3, NB=3, st1="sc1", stamps=0)
for a in sys.argv[2:]:
    k, v = a.split("=")
    CFG[k] = int(v) if v.lstrip("-").isdigit() else v


class Asm:
    def __init__(self):
        self.L = []
        self.vm = []
        self.lg = []
        self.n = 0

    def __call__(self, s):
        for line in s.strip().split("\n"):
            line = line.strip()
            if not line:
                continue
            self.L.append("    " + line if not line.endswith(":") else line)
            if not line.endswith(":") and not line.startswith(";") and not line.startswith("."):
                self.n += 1

    def label(self, l):
        self.L.append(l + ":")

    def vmem(self, s, tag=None):
        self(s)
        self.vm.append(tag)

    def lds(self, s, tag=None):
        self(s)
        self.lg.append(tag)

    def _cnt(self, lst, tag):
        idx = [i for i, t in enumerate(lst) if t == tag]
        if not idx:
            return None
        return len(lst) - 1 - idx[-1]

    def wait(self, vm=None, lg=None):
        parts = []
        if vm is not None:
            n = self._cnt(self.vm, vm)
            if n is not None:
                self.vm = self.vm[len(self.vm) - n:] if n else []
                parts.append(f"vmcnt({min(n, 63)})")
        if lg is not None:
            n = self._cnt(self.lg, lg)
            if n is not None:
                self.lg = self.lg[len(self.lg) - n:] if n else []
                parts.append(f"lgkmcnt({min(n, 15)})")
        if parts:
            self("s_waitcnt " + " ".join(parts))

    def wait_all(self, vm=False, lg=False):
        parts = []
        if vm:
            self.vm = []
            parts.append("vmcnt(0)")
        if lg:
            self.lg = []
            parts.append("lgkmcnt(0)")
        self("s_waitcnt " + " ".join(parts))


def vr(a, n=1):
    return f"v{a}" if n == 1 else f"v[{a}:{a + n - 1}]"


def sr(a, n=1):
    return f"s{a}" if n == 1 else f"s[{a}:{a + n - 1}]"


def srd(A, s, lo, hi, nrec, stride=0):
    A(f"s_mov_b32 s{s}, s{lo}")
    if stride:
        A(f"s_or_b32 s{s+1}, s{hi}, {hex(stride << 16)}")
    else:
        A(f"s_mov_b32 s{s+1}, s{hi}")
    A(f"s_mov_b32 s{s+2}, {hex(nrec)}")
    A(f"s_mov_b32 s{s+3}, 0x00020000")


S_X, S_E, S_SRC, S_DST, S_WA, S_WB, S_WC, S_WU, S_WV, S_OUT, S_DBG, S_WS = range(4, 28, 2)


OFF_ST = 0x8000000
class Stamps:
    def __init__(self, pool):
        self.pool = list(pool)
        self.used = []
    def __call__(self, A, name):
        if not CFG["stamps"]:
            return
        if name in [n for n, _ in self.used]:
            r = dict(self.used)[name]
        else:
            r = self.pool.pop(0)
            self.used.append((name, r))
        A(f"{'s_memtime' if name.startswith('clk') else 's_memrealtime'} s[{r}:{r+1}]")
    def dump(self, A, kern):
        if not CFG["stamps"]:
            return
        self(A, "end")
        self(A, "clk1")
        A("s_mov_b64 exec, -1")
        A("v_mov_b32 v1, 0")
        A("s_waitcnt lgkmcnt(0)")
        for k, (n, r) in enumerate(self.used):
            A(f"v_writelane_b32 v1, s{r}, {k}")
        A("v_mbcnt_lo_u32_b32 v2, -1, 0")
        A("v_lshlrev_b32 v2, 2, v2")
        A("s_lshl_b32 s4, s2, 4")
        A("s_add_u32 s4, s4, s3")
        A("s_lshl_b32 s4, s4, 7")
        A(f"s_add_u32 s4, s4, {OFF_ST + kern * 0x100000}")
        A("s_mov_b64 exec, 0xffffffff")
        A("buffer_store_dword v1, v2, s[32:35], s4 offen")
        A.L.insert(0, "; STAMPS " + str(kern) + " " + ",".join(n for n, _ in self.used))
```

```python
from gcommon import *

L_W = 0
L_X = 65536
L_CNT1 = L_X + 81920
L_SYNC = L_CNT1 + 256
K1_LDS = L_SYNC + 64
GLIM = 28.0


def gen_k1(A):
    NT = 10
    A.label(K1)
    ST = Stamps(range(72, 102, 2))
    if CFG["stamps"]:
        for r in range(72, 102, 2):
            A(f"s_mov_b64 s[{r}:{r+1}], 0")
    ST(A, "start")
    A("s_load_dwordx16 s[4:19], s[0:1], 0")
    A("s_load_dwordx8 s[20:27], s[0:1], 64")
    A("s_cmp_ge_u32 s2, 256")
    A("s_cbranch_scc1 K1_exit")
    A("v_lshrrev_b32 v1, 6, v0")
    A("v_and_b32 v0, 63, v0")
    A("v_readfirstlane_b32 s3, v1")
    A("s_and_b32 s52, s2, 7")
    A("s_lshr_b32 s53, s2, 3")
    A("s_lshl_b32 s52, s52, 3")
    A("s_lshr_b32 s54, s53, 2")
    A("s_add_u32 s52, s52, s54")
    A("s_and_b32 s53, s53, 3")
    A("s_cmp_eq_u32 s3, 8")
    A("s_cbranch_scc1 K1_helper")
    A("s_cmp_eq_u32 s52, 63")
    A("s_cbranch_scc1 K1_exit")
    WB = 64
    ACC = 48
    XR_N = 6
    XF = 24
    OUT = 16
    VMAX = 20
    VX0, VX1, VW, VT = 4, 5, 2, 3
    VR = 6
    VST = 10
    A("s_and_b32 s55, s3, 3")
    A("s_lshr_b32 s54, s3, 2")
    A("s_xor_b32 s58, s54, s52")
    A("s_and_b32 s58, s58, 1")
    A("v_lshrrev_b32 v14, 5, v0")
    A("s_lshl_b32 s56, s55, 2")
    A("v_add_u32 v14, s56, v14")
    A("v_and_b32 v16, 31, v0")
    A("v_xor_b32 v17, v16, v14")
    A(f"v_lshlrev_b32 v{VX0}, 9, v14")
    A("v_xor_b32 v18, 2, v17")
    A(f"v_lshl_add_u32 v{VX1}, v18, 4, v{VX0}")
    A(f"v_lshl_add_u32 v{VX0}, v17, 4, v{VX0}")
    A("v_lshrrev_b32 v14, 3, v0")
    A("v_and_b32 v16, 7, v0")
    A("v_and_b32 v17, 2, v14")
    A("s_and_b32 s56, s3, 1")
    A("s_lshl_b32 s56, s56, 2")
    A("v_xor_b32 v16, v16, v17")
    A("v_xor_b32 v16, s56, v16")
    A("v_lshlrev_b32 v16, 4, v16")
    A(f"v_lshl_add_u32 v{VW}, v14, 9, v16")
    A("s_lshl_b32 s59, s53, 7")
    A("s_lshl_b32 s60, s55, 12")
    A("s_add_u32 s59, s59, s60")
    A("s_lshl_b32 s60, s55, 10")
    A("s_mul_i32 s56, s52, 160*512")
    A("s_lshl_b32 s57, s55, 11")
    A(f"s_add_u32 s57, s57, {L_X}")
    A("s_cmp_eq_u32 s58, 0")
    A("s_waitcnt lgkmcnt(0)")
    ST(A, "karg")
    A(f"s_cselect_b64 s[36:37], s[{S_WB}:{S_WB+1}], s[{S_WA}:{S_WA+1}]")
    A(f"s_cselect_b64 s[40:41], s[{S_WV}:{S_WV+1}], s[{S_WU}:{S_WU+1}]")
    srd(A, 28, S_X, S_X + 1, 10000 * 512)
    A("s_mov_b32 s38, 0x20000")
    A("s_mov_b32 s39, 0x00020000")
    A("s_mov_b32 s42, 0x20000")
    A("s_mov_b32 s43, 0x00020000")

    def dma_x(T):
        A("s_mov_b32 m0, s57")
        A("s_add_u32 s57, s57, 8192")
        A.vmem(f"buffer_load_dwordx4 v{VX0}, s[28:31], s56 offen lds", f"x{T}")
        A.vmem(f"buffer_load_dwordx4 v{VX1}, s[28:31], s56 offen offset:1024 lds", f"x{T}")
        A("s_add_u32 s56, s56, 8192")

    def dma_w():
        for i in range(8):
            A("s_mov_b32 m0, s60")
            A("s_add_u32 s61, s60, 32768")
            A.vmem(f"buffer_load_dwordx4 v{VW}, s[36:39], s59 offen lds", "w")
            A("s_mov_b32 m0, s61")
            A("s_add_u32 s60, s60, 4096")
            A.vmem(f"buffer_load_dwordx4 v{VW}, s[40:43], s59 offen lds", "w")
            A("s_add_u32 s59, s59, 16384")

    def setup_rest():
        wsfix(A)
        srd(A, 32, S_WS, S_WS + 1, WS_BYTES)
        A("v_and_b32 v11, 15, v0")
        A("v_lshrrev_b32 v12, 4, v0")
        A("v_xor_b32 v13, v12, v11")
        A("v_lshlrev_b32 v14, 9, v11")
        A(f"v_add_u32 v14, {L_X}, v14")
        for k in range(4):
            A(f"v_xor_b32 v16, {4*k}, v13")
            A(f"v_lshl_add_u32 v{VR+k}, v16, 4, v14")
        A(f"v_lshlrev_b32 v{VST}, 7, v11")
        A(f"v_lshl_add_u32 v{VST}, v12, 4, v{VST}")
        A("v_bfe_u32 v13, v0, 2, 2")
        A("v_lshl_add_u32 v14, v12, 3, v13")
        A("v_bfe_u32 v16, v0, 3, 2")
        A("v_xor_b32 v16, s55, v16")
        A("v_and_b32 v17, 3, v0")
        A("v_lshlrev_b32 v17, 3, v17")
        A("v_lshl_add_u32 v17, v16, 5, v17")
        A(f"v_lshl_add_u32 v{VT}, v14, 7, v17")
        A("s_lshr_b32 s62, s55, 1")
        A("s_lshl_b32 s63, s53, 1")
        A("s_add_u32 s62, s62, s63")
        A("s_lshl_b32 s63, s58, 3")
        A("s_add_u32 s63, s63, s62")
        A(f"s_mul_i32 s66, s63, {SS}")
        A("s_mul_i32 s67, s52, 160*128")
        A("s_add_u32 s66, s66, s67")
        A("s_and_b32 s67, s55, 1")
        A("s_lshl_b32 s64, s67, 6")
        A("s_add_u32 s66, s66, s64")
        A("s_lshl_b32 s65, s62, 10")
        A("s_lshl_b32 s64, s52, 4")
        A("s_add_u32 s65, s65, s64")
        A("s_lshl_b32 s64, s58, 1")
        A("s_add_u32 s64, s64, s67")
        A("s_lshl_b32 s64, s64, 2")
        A("s_add_u32 s65, s65, s64")
        A(f"s_add_u32 s65, s65, {OFF_FL}")
        A("s_cmp_eq_u32 s58, 0")
        A(f"s_mov_b32 s68, {hex(NLOG2E)}")
        A(f"s_cselect_b32 s68, s68, {hex(NLOG2E ^ 0x80000000)}")
        A(f"v_mov_b32 v{VMAX}, 0")

    A("s_cmp_lg_u32 s54, 0")
    A("s_cbranch_scc1 K1_h1pre")
    dma_x(0)
    dma_w()
    A("s_mov_b64 vcc, 0")
    A("s_branch K1_common")
    A.label("K1_h1pre")
    A("s_add_u32 s57, s57, 8192")
    A("s_add_u32 s56, s56, 8192")
    for T in range(1, NT):
        dma_x(T)
    A("s_mov_b64 vcc, -1")
    A.label("K1_common")
    setup_rest()
    ST(A, "issued")
    A("s_cbranch_vccz K1_h0go")
    X2 = CFG.get("X2", 3)
    A("s_barrier")
    A(f"s_waitcnt vmcnt({2*(NT-1-X2)})")
    A("s_barrier")
    ST(A, "B2")
    dma_w()
    A("s_waitcnt vmcnt(16)")
    A("s_barrier")
    ST(A, "B3")
    A(f"v_mov_b32 v16, {L_SYNC}")
    A("v_mov_b32 v17, 1")
    A("s_waitcnt vmcnt(0)")
    A("s_mov_b64 exec, 1")
    A("ds_add_u32 v16, v17")
    A("s_mov_b64 exec, -1")
    A.label("K1_poll")
    A("ds_read_b32 v17, v16")
    A("s_waitcnt lgkmcnt(0)")
    A("v_readfirstlane_b32 s61, v17")
    A("s_cmp_lt_u32 s61, 4")
    A("s_cbranch_scc0 K1_gemm")
    A("s_sleep 1")
    A("s_branch K1_poll")

    gen_helper(A, ST)

    A.L.append(".p2align 12" if CFG.get("al", 1) else ".p2align 6")
    A.label("K1_h0go")
    A("s_waitcnt vmcnt(0)")
    A("s_barrier")
    A.label("K1_gemm")
    ST(A, "B1")
    ST(A, "clk0")
    A.vm, A.lg = [], []
    order = [(T, s) for T in range(NT) for s in range(8)]
    rd = [0]
    bumped = [False]
    avail = [1]

    def xread():
        i = rd[0]
        if i >= len(order):
            return False
        T, s = order[i]
        if T >= avail[0]:
            return False
        off = T * 8192 + (256 if s >= 4 else 0)
        if T >= 8:
            if not bumped[0]:
                for k in range(4):
                    A(f"v_add_u32 v{VR+k}, 0x10000, v{VR+k}")
                bumped[0] = True
            off -= 65536
        A.lds(f"ds_read_b128 {vr(XF + 4*(i % XR_N), 4)}, v{VR + (s & 3)} offset:{off}", f"f{i}")
        rd[0] += 1
        return True

    def wread(s):
        for m in range(2):
            for j in range(2):
                A.lds(f"ds_read_b64_tr_b16 {vr(WB + 8*s + 4*m + 2*j, 2)}, v{VT} offset:{L_W + m*32768 + s*4096 + j*512}", f"w{s}")

    def epilogue(T):
        g = ACC + 8 * (T % 2)
        ops = []
        ops.append([f"v_mul_f32 v{g}, s68, v{g}", f"v_mul_f32 v{g+1}, s68, v{g+1}"])
        ops.append([f"v_mul_f32 v{g+2}, s68, v{g+2}", f"v_mul_f32 v{g+3}, s68, v{g+3}"])
        ops.append([f"v_max3_f32 v{VMAX}, abs(v{g}), abs(v{g+1}), v{VMAX}", f"v_max3_f32 v{VMAX}, abs(v{g+2}), abs(v{g+3}), v{VMAX}"])
        for r in range(4):
            ops.append([f"v_exp_f32 v{g+r}, v{g+r}"])
        ops.append([f"v_cvt_pk_bf16_f32 v{OUT+r}, v{g+4+r}, v{g+r}" for r in (0, 1)])
        ops.append([f"v_cvt_pk_bf16_f32 v{OUT+r}, v{g+4+r}, v{g+r}" for r in (2, 3)])
        st = [("st", f"buffer_store_dwordx4 {vr(OUT,4)}, v{VST}, s[32:35], s66 offen offset:{(T % 2) * 2048} {CFG['st1']}")]
        if T % 2 == 1:
            st.append("s_add_u32 s66, s66, 4096")
        ops.append(st)
        return ops

    def emit(ops):
        for op in ops:
            if isinstance(op, tuple):
                A.vmem(op[1], "st")
            else:
                A(op)

    def h0_barrier(name, upto):
        A(f"s_cbranch_vccnz K1_skip{name}")
        A("s_barrier")
        A.label(f"K1_skip{name}")
        avail[0] = upto

    def mfma(T, s, m, i):
        a = ACC + 8 * (T % 2) + 4 * m
        c = "0" if s == 0 else vr(a, 4)
        A(f"v_mfma_f32_16x16x32_bf16 {vr(a,4)}, {vr(WB + 8*s + 4*m, 4)}, {vr(XF + 4*(i % XR_N), 4)}, {c}")

    for s in range(3):
        wread(s)
        xread()
    i = 0
    for s in range(8):
        A.wait(lg=f"f{i}")
        mfma(0, s, 0, i)
        mfma(0, s, 1, i)
        if s + 3 < 8:
            wread(s + 3)
            xread()
        if s == 5:
            A.wait_all(lg=True)
            h0_barrier("B2", X2 + 1)
            ST(A, "B2")
            while rd[0] - (i + 1) < XR_N - 1 and xread():
                pass
        elif s > 5:
            xread()
        i += 1
    last = A.n
    for T in range(1, NT):
        fill = epilogue(T - 1)
        for s in range(8):
            A.wait(lg=f"f{i}")
            for m in range(2):
                mfma(T, s, m, i)
                if m == 0:
                    if T == X2 and s == 8 - (XR_N - 1):
                        h0_barrier("B3", NT)
                        ST(A, "B3")
                    while rd[0] - i < XR_N - 1 + 0 and xread():
                        pass
                if fill and A.n - last >= 9:
                    emit(fill.pop(0))
            i += 1
        assert not fill, T
        last = A.n
    A("s_nop 7")
    for ops in epilogue(NT - 1):
        emit(ops)
    ST(A, "epi")
    A(f"v_cmp_nge_f32 vcc, {hex(f32(GLIM))}, v{VMAX}")
    A("v_mov_b32 v1, 0")
    A("s_or_b32 s67, vcc_lo, vcc_hi")
    A("v_mov_b32 v16, s67")
    A("s_mov_b64 exec, 1")
    A("buffer_store_dword v16, v1, s[32:35], s65 offen")
    A("s_mov_b64 exec, -1")
    A("s_cbranch_vccnz K1_redo")
    if CFG["stamps"]:
        A("s_waitcnt vmcnt(0)")
    A.label("K1_end")
    ST.dump(A, 0)
    A.label("K1_exit")
    A("s_endpgm")
    A.label("K1_redo")
    A("s_waitcnt vmcnt(0)")
    A("s_sub_u32 s66, s66, 20480")
    for k in range(4):
        A(f"v_subrev_u32 v{VR+k}, 0x10000, v{VR+k}")
    A("s_mov_b32 s61, 0")
    A("s_mov_b32 s62, 0x3fffffff")
    A.label("K1_redo_loop")
    for s in range(8):
        A(f"ds_read_b128 {vr(XF,4)}, v{VR + (s & 3)} offset:{256 if s >= 4 else 0}")
        A("s_waitcnt lgkmcnt(0)")
        mfma(0, s, 0, 0)
        mfma(0, s, 1, 0)
    A("s_nop 7")
    g = ACC
    for r in range(4):
        A(f"v_mul_f32 v{g+r}, s68, v{g+r}")
        A(f"v_exp_f32 v24, v{g+r}")
        A(f"v_cvt_pk_bf16_f32 v25, v{g+4+r}, v{g+r}")
        A(f"v_cvt_pk_bf16_f32 v{OUT+r}, v{g+4+r}, v24")
        A(f"v_lshrrev_b32 v26, 1, v25")
        A(f"v_or_b32 v26, 0x80000000, v26")
        A(f"v_bfi_b32 v25, s62, v25, v26")
        A(f"v_and_b32 v26, 0x7fffffff, v{g+r}")
        A(f"v_cmp_nge_f32 vcc, {hex(f32(GLIM))}, v26")
        A("s_nop 1")
        A(f"v_cndmask_b32 v{OUT+r}, v{OUT+r}, v25, vcc")
    A(f"buffer_store_dwordx4 {vr(OUT,4)}, v{VST}, s[32:35], s66 offen {CFG['st1']}")
    for k in range(4):
        A(f"v_add_u32 v{VR+k}, 0x2000, v{VR+k}")
    A("s_add_u32 s66, s66, 2048")
    A("s_add_u32 s61, s61, 1")
    A("s_cmp_lt_u32 s61, 10")
    A("s_cbranch_scc1 K1_redo_loop")
    A("s_endpgm")
    A.label("K1_code_end")


def gen_helper(A, ST):
    A.vm, A.lg = [], []
    A.label("K1_helper")
    A("s_getpc_b64 s[60:61]")
    A.label("K1_pc")
    A("v_mul_u32_u24 v1, 40, v0")
    A("v_mul_u32_u24 v2, 20, v0")
    A("s_mul_i32 s56, s2, 2560")
    A("s_mul_i32 s57, s2, 1280")
    A("v_lshlrev_b32 v3, 2, v0")
    A("v_mov_b32 v4, 0")
    A("v_mov_b32 v5, 1")
    A(f"v_add_u32 v6, {L_CNT1}, v3")
    A("ds_write_b32 v6, v4")
    A("ds_write_b32 v6, v4 offset:64")
    A("v_lshlrev_b32 v7, 10, v0")
    A("s_lshr_b32 s58, s2, 1")
    A("s_lshl_b32 s58, s58, 2")
    A("s_and_b32 s59, s2, 1")
    A("s_lshl_b32 s59, s59, 9")
    A("s_add_u32 s58, s58, s59")
    A(f"s_add_u32 s58, s58, {OFF_ENDS}")
    A("v_lshlrev_b32 v11, 3, v0")
    A("v_lshlrev_b32 v12, 7, v0")
    A("s_waitcnt lgkmcnt(0)")
    ST(A, "karg")
    wsfix(A)
    srd(A, 32, S_WS, S_WS + 1, WS_BYTES)
    A("s_cmp_lt_u32 s2, 250")
    A("s_cbranch_scc1 K1_h2")
    A("s_mov_b32 exec_hi, 0")
    A("buffer_store_dword v4, v7, s[32:35], s58 offen")
    A("s_endpgm")
    A.label("K1_h2")
    srd(A, 40, S_DST, S_DST + 1, 640000)
    srd(A, 36, S_SRC, S_SRC + 1, 640000)
    srd(A, 44, S_E, S_E + 1, 320000)
    srd(A, 48, S_WC, S_WC + 1, 512)
    D, S, E, RK, W0 = 16, 26, 36, 42, 52
    WCR = 14
    A.vmem(f"buffer_load_dwordx4 {vr(D,4)}, v1, s[40:43], s56 offen", "d")
    A.vmem(f"buffer_load_dwordx4 {vr(D+4,4)}, v1, s[40:43], s56 offen offset:16", "d")
    A.vmem(f"buffer_load_dwordx2 {vr(D+8,2)}, v1, s[40:43], s56 offen offset:32", "d")
    A.vmem(f"buffer_load_dwordx4 {vr(S,4)}, v1, s[36:39], s56 offen", "s")
    A.vmem(f"buffer_load_dwordx4 {vr(S+4,4)}, v1, s[36:39], s56 offen offset:16", "s")
    A.vmem(f"buffer_load_dwordx2 {vr(S+8,2)}, v1, s[36:39], s56 offen offset:32", "s")
    A.vmem(f"buffer_load_dwordx4 {vr(E,4)}, v2, s[44:47], s57 offen", "s")
    A.vmem(f"buffer_load_dword {vr(E+4)}, v2, s[44:47], s57 offen offset:16", "s")
    A.vmem(f"buffer_load_dwordx2 {vr(WCR,2)}, v11, s[48:51], 0 offen", "s")
    for k in range(CFG.get("npf", 2)):
        A(f"v_add_u32 v13, {8192*k}, v12")
        A("v_min_u32 v13, CODE_LIM, v13")
        A.vmem(f"global_load_dword v{90+k}, v13, s[60:61]", "pf")
    srd(A, 48, S_DBG, S_DBG + 1, 256)
    BN = 72
    A.wait(vm="d")
    ST(A, "B1")
    for k in range(10):
        A(f"v_and_b32 v{BN+k}, 31, v{D+k}")
        A(f"v_lshlrev_b32 v{BN+k}, 2, v{BN+k}")
        A(f"v_add_u32 v{BN+k}, {L_CNT1}, v{BN+k}")
        A(f"ds_add_rtn_u32 v{RK+k}, v{BN+k}, v5")
    A("ds_read_b32 v8, v6")
    A("s_and_b32 s59, s2, 1")
    A("s_lshl_b32 s60, s59, 7")
    A(f"s_mul_i32 s59, s59, {HALF}")
    A(f"s_add_u32 s59, s59, {OFF_BINS}")
    A(f"s_mov_b32 s61, {BINSTRIDE}")
    A("v_mul_lo_u32 v10, v0, s61")
    A("v_add_u32 v10, s59, v10")
    A("s_waitcnt lgkmcnt(0)")
    A("v_mov_b32 v9, v8")
    A("s_mov_b32 exec_hi, 0")
    A.vmem("buffer_atomic_add v9, v3, s[48:51], s60 offen sc0", "at")
    A("s_mov_b64 exec, -1")
    ST(A, "issued")
    A.wait(vm="s")
    A("s_mov_b32 s62, 0x7fff7fff")
    EM = 92
    A(f"v_and_b32 v{WCR}, s62, v{WCR}")
    A(f"v_and_b32 v{WCR+1}, s62, v{WCR+1}")
    A(f"v_pk_max_u16 v{WCR}, v{WCR}, v{WCR+1}")
    A(f"v_lshlrev_b32 v{WCR+1}, 16, v{WCR}")
    A(f"v_max_u32 v{WCR}, v{WCR}, v{WCR+1}")
    fill = [f"v_and_b32 v{EM+k}, s62, v{E+k}" for k in range(5)]
    fill += [f"v_pk_max_u16 v{EM}, v{EM}, v{EM+1}", f"v_pk_max_u16 v{EM+2}, v{EM+2}, v{EM+3}",
             f"v_pk_max_u16 v{EM}, v{EM}, v{EM+4}", f"v_pk_max_u16 v{EM}, v{EM}, v{EM+2}",
             f"v_lshlrev_b32 v{EM+1}, 16, v{EM}", f"v_max_u32 v{EM}, v{EM}, v{EM+1}", "s_nop 0"]
    for dpp in ["row_shr:1", "row_shr:2", "row_shr:4", "row_shr:8", "row_bcast:15 row_mask:0xa", "row_bcast:31 row_mask:0xc"]:
        rm = "" if "row_mask" in dpp else " row_mask:0xf"
        A(fill.pop(0))
        A(fill.pop(0))
        A(f"v_max_u32_dpp v{WCR}, v{WCR}, v{WCR} {dpp}{rm} bank_mask:0xf")
    assert not fill
    A(f"v_and_b32 v{WCR}, 0xffff0000, v{WCR}")
    A(f"v_mul_f32 v{WCR}, {hex(f32(1.4426950408889634))}, v{WCR}")
    for k in range(10):
        if k % 2 == 0:
            A(f"v_lshlrev_b32 v{W0+2*k}, 16, v{E+k//2}")
        else:
            A(f"v_and_b32 v{W0+2*k}, 0xffff0000, v{E+k//2}")
        if k == 1:
            A(f"v_readlane_b32 s62, v{WCR}, 63")
        A(f"v_lshrrev_b32 v{W0+2*k+1}, 5, v{D+k}")
        A(f"v_lshlrev_b32 v{W0+2*k+1}, 2, v{W0+2*k+1}")
    A("s_and_b32 s62, s62, 0x7f800000")
    A(f"s_min_u32 s63, s62, {hex(200 << 23)}")
    A(f"s_add_u32 s64, s63, {hex(11 << 23)}")
    A(f"s_sub_u32 s63, {hex(243 << 23)}, s63")
    A(f"v_mov_b32 v13, {hex(f32(2.0**23 + 32768))}")
    A(f"v_mul_f32 v{EM}, s64, v{EM}")
    for k in range(10):
        A(f"v_fma_f32 v{W0+2*k}, v{W0+2*k}, s64, v13")
    for k in range(10):
        A(f"v_lshl_or_b32 v{W0+2*k}, v{W0+2*k}, 16, v{S+k}")
    A(f"v_cmp_nge_f32 vcc, {hex(f32(32767.0))}, v{EM}")
    ST(A, "B2")
    A("s_barrier")
    A("s_barrier")
    A("s_barrier")
    A("s_cmp_ge_u32 s2, 8")
    A("s_cbranch_scc1 K1_h3")
    A(f"s_mul_i32 s59, s2, {SS}")
    A(f"s_add_u32 s59, s59, {DUMMY_ROW*128}")
    A(f"v_mov_b32 v13, {hex(f32(2.0**64))}")
    A("s_mov_b32 exec_hi, 0")
    A("buffer_store_dword v13, v3, s[32:35], s59 offen")
    A("s_mov_b64 exec, -1")
    A.label("K1_h3")
    A(f"s_cmp_ge_u32 s62, {hex(200 << 23)}")
    A("s_cselect_b64 vcc, -1, vcc")
    A("s_cmp_lg_u64 vcc, 0")
    A("s_cselect_b32 s62, 0x80000000, 0")
    A("s_or_b32 s62, s62, s63")
    A("s_waitcnt vmcnt(0)")
    ST(A, "B3")
    A("v_add_u32 v8, v8, v9")
    A("v_or_b32 v8, s62, v8")
    A("v_lshl_add_u32 v10, v9, 3, v10")
    A("ds_write_b32 v6, v10")
    A("s_mov_b32 exec_hi, 0")
    A("buffer_store_dword v8, v7, s[32:35], s58 offen")
    A("s_mov_b64 exec, -1")
    for k in range(10):
        A(f"ds_read_b32 v{D+k}, v{BN+k}")
    for k in range(10):
        A(f"s_waitcnt lgkmcnt({9-k})")
        A(f"v_lshl_add_u32 v{D+k}, v{RK+k}, 3, v{D+k}")
        A(f"buffer_store_dwordx2 {vr(W0+2*k,2)}, v{D+k}, s[32:35], 0 offen {CFG.get('stb','')}")
    ST(A, "epi")
    if CFG["stamps"]:
        A("s_waitcnt vmcnt(0)")
        A("s_branch K1_end")
    else:
        A("s_endpgm")
```

```python
import sys
sys.path.insert(0, "work")
from gcommon import *
from gen2_k1 import gen_k1, K1_LDS

DPPS = ["row_shr:1", "row_shr:2", "row_shr:4", "row_shr:8", "row_bcast:15 row_mask:0xa", "row_bcast:31 row_mask:0xc"]


def gen_k2(A):
    NB = CFG["NB"]
    STR = 200
    CAP = 48
    L_DEG, L_CUR, L_FLAG, L_CNT, L_SORT = 0, 1536, 1792, 2048, 6144
    L_TAB = 8192
    L_ELL = L_TAB + 65536
    LDS_TOTAL = L_ELL + 65536
    DUMW = 0x80000000 | DUMMY_ROW
    A.vm, A.lg = [], []
    A.inloop = False
    A.label(K2)
    ST = Stamps(list(range(92, 102, 2)) + list(range(6, 28, 2)))
    if CFG["stamps"]:
        for r in range(92, 102, 2):
            A(f"s_mov_b64 s[{r}:{r+1}], 0")
    ST(A, "start")
    A("s_load_dwordx16 s[4:19], s[0:1], 0")
    A("s_load_dwordx8 s[20:27], s[0:1], 64")
    A("s_cmp_ge_u32 s2, 256")
    A("s_cbranch_scc1 K2_exit")
    A("v_lshrrev_b32 v1, 6, v0")
    A("v_and_b32 v2, 63, v0")
    A("v_readfirstlane_b32 s3, v1")
    A("s_and_b32 s52, s2, 7")
    A("s_lshr_b32 s53, s2, 3")
    A("v_and_b32 v11, 511, v0")
    A("v_lshlrev_b32 v12, 4, v11")
    A("v_lshlrev_b32 v13, 3, v2")
    SUB8 = 15
    A(f"v_and_b32 v{SUB8}, 56, v13")
    A("s_lshr_b32 s54, s3, 3")
    A(f"s_mul_i32 s55, s53, {BINSTRIDE}")
    A(f"s_mul_i32 s56, s54, {HALF}")
    A("s_add_u32 s55, s55, s56")
    A(f"s_add_u32 s55, s55, {OFF_BINS}")
    A("s_add_u32 s56, s55, 8192")
    A("s_add_u32 s60, s55, 16384")
    A("s_and_b32 s62, s3, 7")
    A("s_cmp_lt_u32 s62, 5")
    A("s_cselect_b32 s57, s60, s55")
    A("s_lshl_b32 s59, s52, 10")
    A(f"s_add_u32 s59, s59, {OFF_FL - 7168}")
    A("s_cmp_eq_u32 s3, 15")
    A("s_cselect_b32 s57, s59, s57")
    A("s_lshl_b32 s58, s53, 1")
    A("s_add_u32 s58, s58, s54")
    A("s_lshl_b32 s58, s58, 9")
    A(f"s_add_u32 s58, s58, {OFF_ENDS}")
    A("s_lshl_b32 s63, s52, 6")
    A("v_subrev_u32 v14, 704, v0")
    A("v_lshlrev_b32 v14, 7, v14")
    A(f"s_mul_i32 s61, s52, {SS}")
    A("s_mul_i32 s64, s53, 40960")
    A("s_add_u32 s64, s64, s61")
    A("s_cmp_ge_u32 s3, 11")
    A("s_cselect_b64 s[66:67], -1, 0")
    A(f"s_mov_b32 s34, {hex(WS_BYTES)}")
    A("s_mov_b32 s35, 0x00020000")
    A("s_mov_b32 s30, 512")
    A("s_mov_b32 s31, 0x00020000")
    A("s_waitcnt lgkmcnt(0)")
    ST(A, "karg")
    wsfix(A)
    A(f"s_mov_b64 s[32:33], s[{S_WS}:{S_WS+1}]")
    A(f"s_mov_b64 s[28:29], s[{S_WC}:{S_WC+1}]")
    EN, ENDS, WCR = 16, 28, 30
    E2R = 112
    ENT = lambda k: (EN + 2 * k) if k < 4 else (E2R + 2 * (k - 4))
    A.vmem(f"buffer_load_dwordx2 {vr(ENDS,2)}, v13, s[32:35], s58 offen", "ends")
    A.vmem(f"buffer_load_dwordx4 {vr(EN,4)}, v12, s[32:35], s55 offen", "e0")
    A.vmem(f"buffer_load_dwordx2 {vr(WCR,2)}, v{SUB8}, s[28:31], s63 offen", "wc")
    A.vmem(f"buffer_load_dwordx4 {vr(EN+4,4)}, v12, s[32:35], s56 offen", "e1")
    A.vmem(f"buffer_load_dwordx4 {vr(E2R,4)}, v12, s[32:35], s57 offen", "e2")
    if CFG.get("pf", 2) == 1:
        A("s_mov_b64 exec, s[66:67]")
        A.vmem("buffer_load_dword v127, v14, s[32:35], s64 offen", "pf")
        A("s_mov_b64 exec, -1")
    A("v_lshlrev_b32 v3, 4, v0")
    A(f"v_add_u32 v10, {L_ELL}, v3")
    for k in range(4):
        A(f"v_mov_b32 v{4+k}, {hex(DUMW)}")
    A("v_mov_b64 v[8:9], 0")
    A("v_lshlrev_b32 v1, 3, v0")
    A.lds("ds_write_b64 v1, v[8:9]")
    for k in range(4):
        A.lds(f"ds_write_b128 v10, v[4:7] offset:{16384*k}")
    A(f"s_add_u32 s36, s{S_WS}, s61")
    A(f"s_addc_u32 s37, s{S_WS+1}, 0")
    A(f"s_add_u32 s40, s36, {OFF_AU}")
    A(f"s_addc_u32 s41, s37, 0")
    A(f"s_or_b32 s37, s37, {hex(128 << 16)}")
    A(f"s_mov_b32 s38, {ROWS}")
    A("s_mov_b32 s39, 0x00020000")
    A(f"s_mov_b32 s42, {10000*128}")
    A("s_mov_b32 s43, 0x00020000")
    srd(A, 44, S_X, S_X + 1, 10000 * 512)
    srd(A, 48, S_OUT, S_OUT + 1, 10000 * 512)
    A("s_lshl_b32 s86, s53, 7")
    A("s_lshl_b32 s87, s53, 9")
    A("s_add_u32 s87, s87, s63")
    FK = 48
    A("v_lshrrev_b32 v44, 4, v0")
    A("v_and_b32 v45, 8, v0")
    A("v_cmp_ne_u32 vcc, 0, v45")
    A(f"v_lshlrev_b32 v45, 4, v45")
    A("v_add_u32 v44, v44, v45")
    A("v_subrev_u32 v44, 128, v44")
    A(f"v_cvt_f32_i32 v{FK}, v44")
    A(f"v_mov_b32 v46, {hex(f32(-1.4426950408889634*256))}")
    A(f"v_mov_b32 v47, {hex(NLOG2E)}")
    A("v_cndmask_b32 v46, v46, v47, vcc")
    for k in range(1, 4):
        A(f"v_add_f32 v{FK+k}, {hex(f32(64.0*k))}, v{FK}")
    LC, SELA, SELB = 122, 123, 124
    A(f"v_mul_u32_u24 v{LC}, 0x202, v{SUB8}")
    A(f"v_or_b32 v{LC}, 0x8000, v{LC}")
    A(f"v_mov_b32 v{SELA}, 0x0c0c0700")
    A(f"v_mov_b32 v47, 0x0c0c0601")
    A(f"v_cndmask_b32 v{SELB}, v47, v{SELA}, vcc")
    A(f"v_cndmask_b32 v{SELA}, v{SELA}, v47, vcc")
    A("v_lshlrev_b32 v11, 1, v11")
    A("v_and_b32 v40, 15, v2")
    A("v_lshlrev_b32 v40, 2, v40")
    A("v_mov_b32 v41, 1")
    A(f"s_mov_b32 s59, {L_ELL}")
    A.wait(vm="ends")
    ST(A, "ends")
    A(f"v_max_u32 v{ENDS}, v{ENDS}, v{ENDS+1}")
    for dpp in DPPS:
        rm = "" if "row_mask" in dpp else " row_mask:0xf"
        A("s_nop 1")
        A(f"v_max_u32_dpp v{ENDS}, v{ENDS}, v{ENDS} {dpp}{rm} bank_mask:0xf")
    A("s_nop 0")
    A(f"v_readlane_b32 s65, v{ENDS}, 63")
    A("s_and_b32 s68, s65, 0x7f800000")
    A("s_and_b32 s69, s65, 0x807fffff")
    A("s_and_b32 s65, s65, 0x007fffff")
    for k in range(6):
        i, o = k // 2, k % 2
        A(f"s_sub_u32 s61, s65, {1024*i + o}")
        A(f"v_cmp_gt_i32 s[{70+2*k}:{71+2*k}], s61, v11")
    A("v_mul_f32 v46, s68, v46")
    A.wait_all(lg=True)
    A("s_barrier")
    ST(A, "BA")
    if CFG["stamps"]:
        for r in range(6, 28, 2):
            A(f"s_mov_b64 s[{r}:{r+1}], 0")
    RK, EA_ = 32, 34
    WSL, TV = 52, 64

    def rank(i):
        for o in range(2):
            k = 2 * i + o
            A(f"s_mov_b64 exec, s[{70+2*k}:{71+2*k}]")
            A(f"ds_add_rtn_u32 v{RK+o}, v{ENT(k)+1}, v41 offset:{L_DEG}")
        A("s_mov_b64 exec, -1")
        for o in range(2):
            A(f"v_mad_u32_u24 v{EA_+o}, v{ENT(2*i+o)+1}, 50, s59")

    def place(i):
        A("s_waitcnt lgkmcnt(0)")
        for o in range(2):
            A(f"v_min_u32 v{RK+o}, {CAP}, v{RK+o}")
        for o in range(2):
            A(f"v_lshl_add_u32 v{EA_+o}, v{RK+o}, 2, v{EA_+o}")
            A(f"v_lshl_add_u32 v{RK+o}, v{RK+o}, 6, v40")
        for o in range(2):
            k = 2 * i + o
            A(f"s_mov_b64 exec, s[{70+2*k}:{71+2*k}]")
            A(f"ds_write_b32 v{EA_+o}, v{ENT(k)}")
            A(f"ds_add_u32 v{RK+o}, v41 offset:{L_CNT}")
        A("s_mov_b64 exec, -1")

    def tab(ks):
        for k in ks:
            f = vr(FK + (k & ~1), 2)
            sel = "op_sel:[0,1] op_sel_hi:[1,1]" if k & 1 else "op_sel_hi:[1,0]"
            for c in (0, 2):
                A(f"v_pk_mul_f32 {vr(TV+4*k+c,2)}, {vr(WSL+c,2)}, {f} {sel}")
        for k in ks:
            for c in range(4):
                A(f"v_exp_f32 v{TV+4*k+c}, v{TV+4*k+c}")

    def tabw(ks):
        for k in ks:
            A(f"ds_write_b128 v3, {vr(TV+4*k,4)} offset:{L_TAB + 16384*k}")

    A.wait(vm="e0")
    ST(A, "e0")
    rank(0)
    if CFG.get("pf", 2) == 2:
        A("s_mov_b64 exec, s[66:67]")
        A.vmem("buffer_load_dword v127, v14, s[32:35], s64 offen", "pf")
        A("s_mov_b64 exec, -1")
    if CFG.get("pfau", 0):
        A("v_lshlrev_b32 v14, 5, v14")
        A("s_mov_b64 exec, s[66:67]")
        A.vmem("buffer_load_dword v126, v14, s[40:43], s86 offen", "pf")
        A("s_mov_b64 exec, -1")
    A("s_cmp_gt_u32 s69, 3072")
    A("s_cbranch_scc0 K2_capok")
    A(f"ds_write_b32 v8, v41 offset:{L_FLAG}")
    A.label("K2_capok")
    A.wait(vm="wc")
    A(f"v_lshlrev_b32 v{WSL}, 16, v{WCR}")
    A(f"v_and_b32 v{WSL+1}, 0xffff0000, v{WCR}")
    A(f"v_lshlrev_b32 v{WSL+2}, 16, v{WCR+1}")
    A(f"v_and_b32 v{WSL+3}, 0xffff0000, v{WCR+1}")
    for k in range(4):
        A(f"v_mul_f32 v{WSL+k}, v46, v{WSL+k}")
    place(0)
    tab([0, 1])
    A.wait(vm="e1")
    ST(A, "e1")
    rank(1)
    tabw([0, 1])
    A("s_lshl_b32 s61, s62, 7")
    A("s_add_u32 s61, s61, 2048")
    place(1)
    tab([2, 3])
    A("s_cmp_gt_u32 s65, s61")
    A("s_cbranch_scc0 K2_noe2")
    A("s_cmp_lt_u32 s62, 5")
    A("s_cbranch_scc0 K2_late_e2")
    A.wait(vm="e2")
    A.label("K2_e2go")
    rank(2)
    place(2)
    A.label("K2_noe2")
    tabw([2, 3])
    A("s_waitcnt lgkmcnt(0)")
    ST(A, "preB")
    A("s_barrier")
    ST(A, "BB")
    A("s_cmp_ge_u32 s3, 5")
    A("s_cbranch_scc1 K2_nosort")
    A("v_lshlrev_b32 v16, 2, v0")
    A(f"ds_read_b32 v17, v16 offset:{L_DEG}")
    A("s_waitcnt lgkmcnt(0)")
    A(f"v_cmp_lt_u32 vcc, {CAP}, v17")
    A(f"v_min_u32 v17, {CAP}, v17")
    A("v_lshlrev_b32 v18, 6, v17")
    A("v_lshlrev_b32 v19, 2, v17")
    for k in range(4):
        A(f"ds_read_b128 {vr(20+4*k,4)}, v18 offset:{L_CNT + 16*k}")
    A(f"ds_add_rtn_u32 v36, v19, v41 offset:{L_CUR}")
    A("s_cbranch_vccz K2_noovf")
    A(f"ds_write_b32 v8, v41 offset:{L_FLAG}")
    A.label("K2_noovf")
    A("v_lshl_or_b32 v17, v17, 16, v0")
    A("s_waitcnt lgkmcnt(0)")
    A("v_add3_u32 v20, v20, v21, v22")
    A("v_add3_u32 v23, v23, v24, v25")
    A("v_add3_u32 v26, v26, v27, v28")
    A("v_add3_u32 v29, v29, v30, v31")
    A("v_add3_u32 v32, v32, v33, v34")
    A("v_add3_u32 v20, v20, v23, v26")
    A("v_add3_u32 v29, v29, v32, v35")
    A("v_add3_u32 v20, v20, v29, v36")
    A("v_min_u32 v20, 319, v20")
    A("v_lshlrev_b32 v20, 2, v20")
    A(f"ds_write_b32 v20, v17 offset:{L_SORT}")
    A.label("K2_sorted")
    U0, U1, V0, V1, M = 16, 20, 24, 28, 32
    T = 36
    RA, DEN, NUM = 52, 56, 60
    G = 64
    IX = 96
    Q = 100
    AUN = [RA, 108, 112]
    XR = [116, 118, 120]
    PA, PN1, PN2 = 6, 7, 9
    OA = [10, 11, 12]
    LOC = 44
    SUB16 = IX + 1
    rounds = [(0, 4, 15), (1, 2, 15), (3, 7, 9), (5, 6, 8)]
    A("s_lshr_b32 s61, s3, 2")
    A("s_lshl_b32 s61, s61, 2")
    A("s_and_b32 s64, s3, 3")
    A("s_sub_u32 s66, 3, s64")
    CH = [70, 71, 72]
    for j in range(3):
        c = sum(rounds[l][j] << (4 * l) for l in range(4))
        A(f"s_lshr_b32 s{CH[j]}, {hex(c)}, s61")
        A(f"s_and_b32 s{CH[j]}, s{CH[j]}, 15")
        A(f"s_bitcmp1_b32 s{CH[j]}, 0")
        A("s_cselect_b32 s68, s66, s64")
        A(f"s_lshl_b32 s{CH[j]}, s{CH[j]}, 2")
        A(f"s_add_u32 s{CH[j]}, s{CH[j]}, s68")
        A(f"s_lshl_b32 s{CH[j]}, s{CH[j]}, 5")
    A("v_lshrrev_b32 v1, 3, v2")
    A("v_lshlrev_b32 v1, 2, v1")
    for j in range(3):
        A(f"v_add_u32 v{LOC+j}, s{CH[j]}, v1")
    A(f"v_lshlrev_b32 v{SUB16}, 1, v{SUB8}")
    A(f"v_mov_b32 v{IX+3}, v{SUB16}")
    I0 = G + 8 * NB - 4 * NB
    I0 = 100 if False else 16
    for k in range(2 * NB):
        A(f"v_mov_b32 v{I0+2*k+1}, v{SUB16}")
    for k in range(0, 4, 2):
        A(f"v_mov_b64 {vr(DEN+k,2)}, 0")
        A(f"v_mov_b64 {vr(NUM+k,2)}, 0")
    A(f"s_mov_b32 s82, {hex(f32(1e-6))}")
    A(f"s_mov_b32 s83, {hex(f32(1e-6))}")
    A("s_mov_b32 s84, 0x3f80")
    A("s_mov_b32 s85, 0x3f800000")
    A("s_getpc_b64 s[90:91]")
    A.label("K2_pc")
    A("s_add_u32 s90, s90, K2_flush0-K2_pc")
    A("s_addc_u32 s91, s91, 0")
    A(f"s_movk_i32 s61, {STR}")
    A("s_waitcnt lgkmcnt(0)")
    A("s_barrier")
    ST(A, "BC")
    for j in range(3):
        A(f"ds_read_b32 v{LOC+j}, v{LOC+j} offset:{L_SORT}")
    A(f"ds_read_b32 v1, v8 offset:{L_FLAG}")
    A(f"v_mov_b32 v13, {L_ELL}")
    A("s_waitcnt lgkmcnt(3)")
    A(f"v_and_b32 v{OA[0]}, 0xffff, v{LOC}")
    A(f"v_mad_u32_u24 v{PA}, v{OA[0]}, s61, v13")
    A.lg = []
    for b in range(NB):
        A.lds(f"ds_read_u16 v{I0+4*b}, v{PA} offset:{8*b}", f"i{b}")
        A.lds(f"ds_read_u16 v{I0+4*b+2}, v{PA} offset:{8*b+4}", f"i{b}")
        if b == 0:
            A.lds(f"ds_read_b64 {vr(Q,2)}, v{PA}", "q0")
    for b in range(1, NB):
        A.lds(f"ds_read_b64 {vr(Q+2*b,2)}, v{PA} offset:{8*b}", f"q{b}")
    A(f"v_lshl_add_u32 v14, v{OA[0]}, 12, v{SUB16}")
    A(f"buffer_load_dwordx4 {vr(RA,4)}, v14, s[40:43], s86 offen")
    A(f"s_waitcnt lgkmcnt({min(15, len(A.lg))})")
    A("v_cmp_ne_u32 vcc, 0, v1")
    for j in range(3):
        A(f"v_readfirstlane_b32 s{73+j}, v{LOC+j}")
    for j in (1, 2):
        A(f"v_and_b32 v{OA[j]}, 0xffff, v{LOC+j}")
    A("s_cbranch_vccnz K2_slow")
    for b in range(NB):
        A.wait(lg=f"i{b}")
        A(f"buffer_load_dwordx4 {vr(G+8*b,4)}, {vr(I0+4*b,2)}, s[36:39], 0 idxen offen")
        A(f"buffer_load_dwordx4 {vr(G+8*b+4,4)}, {vr(I0+4*b+2,2)}, s[36:39], 0 idxen offen")

    def E_(off):
        if "i" in CFG.get("xp", "") and A.inloop:
            return
        A(f"ds_read_u16 v{IX}, v{PA} offset:{off}")
        A(f"ds_read_u16 v{IX+2}, v{PA} offset:{off+4}")

    def F_(b, off):
        A(f"ds_read_b64 {vr(Q+2*b,2)}, v{PA} offset:{off}")

    XP = CFG.get("xp", "")
    def G_(b):
        if "g" in XP:
            return
        A(f"buffer_load_dwordx4 {vr(G+8*b,4)}, {vr(IX,2)}, s[36:39], 0 idxen offen")
        A(f"buffer_load_dwordx4 {vr(G+8*b+4,4)}, {vr(IX+2,2)}, s[36:39], 0 idxen offen")

    def T_(b):
        for e in range(2):
            A(f"v_perm_b32 v{T+8*e}, v{Q+2*b+e}, v{LC}, v{SELA}")
            A(f"v_perm_b32 v{T+8*e+4}, v{Q+2*b+e}, v{LC}, v{SELB}")
        for k in range(4):
            if "t" not in XP:
                A(f"ds_read_b128 {vr(T+4*k,4)}, v{T+4*k} offset:{L_TAB}")

    A(f"v_mad_u32_u24 v{PN1}, v{OA[1]}, s61, v13")
    A(f"v_mad_u32_u24 v{PN2}, v{OA[2]}, s61, v13")
    T_(0)
    E_(8 * NB)
    A(f"v_add_u32 v{PA}, {8*NB}, v{PA}")
    for j in range(3):
        A(f"s_add_u32 s{73+j}, s{73+j}, 0x10000")
        A(f"s_lshr_b32 s{73+j}, s{73+j}, 17")
        A(f"s_max_u32 s{73+j}, s{73+j}, {2*NB if j == 0 else 1}")
    DUMP = L_ELL + 320 * STR
    A("s_add_u32 s80, s73, s74")
    A("s_add_u32 s81, s80, s75")
    for j in range(3):
        A(f"s_sub_u32 s{73+j}, s{73+j}, 1")
    A("s_cmp_lt_u32 s3, 8")
    A("s_cselect_b32 s79, 1, 2")
    A("s_cselect_b32 s78, 0x7fff, s75")
    A("s_cselect_b32 s81, s80, s81")
    A("s_cbranch_scc0 K2_three")
    A(f"v_mov_b32 v{PN2}, {DUMP}")
    A.label("K2_three")
    SP, SP1, SP2 = 76, 77, 78
    SC = 73
    SR, SL = 80, 72
    A(f"s_sub_u32 s{SP}, s73, {NB}")
    A(f"s_mov_b32 s{SP1}, s74")
    PR = [int(x) for x in str(CFG.get("pr", "9,6,3")).split(",")]
    A("s_lshr_b32 s61, s3, 2")
    A("s_sub_u32 s61, 3, s61")
    A(f"s_mul_i32 s61, s61, {CFG.get('stag', NB)}")
    A(f"s_sub_u32 s{SR}, s73, {2*NB-1}")
    A(f"s_min_u32 s{SR}, s{SR}, s61")
    A(f"s_sub_i32 s81, s81, s{SR}")
    A(f"s_sub_i32 s81, s81, {PR[0] + 1}")
    A(f"s_mov_b32 s{SL}, 0")
    for j in range(3):
        A(f"v_lshl_add_u32 v{OA[j]}, v{OA[j]}, 14, v{SUB8}")
    sw_blocks = []
    if CFG.get("prio", 1):
        A("s_setprio 3")
    ST(A, "loop")
    ST(A, "clk0")
    if CFG.get("lal", 1):
        A.L.append(".p2align 6")
    A.label("K2_loop")
    A.inloop = True
    nloop0 = len(A.L)
    for b in range(NB):
        g0, g1 = G + 8 * b, G + 8 * b + 4
        A(f"s_waitcnt vmcnt({2*(NB-1)}) lgkmcnt(0)")
        for k in (0, 2):
            A(f"v_pk_mul_f32 {vr(U0+k,2)}, {vr(T+k,2)}, {vr(g0+k,2)}")
        for k in (0, 2):
            A(f"v_pk_mul_f32 {vr(U1+k,2)}, {vr(T+8+k,2)}, {vr(g1+k,2)}")
        for k in (0, 2):
            A(f"v_lshlrev_b64 {vr(V0+k,2)}, 16, {vr(g0+k,2)}")
            A(f"v_lshlrev_b64 {vr(V1+k,2)}, 16, {vr(g1+k,2)}")
        G_(b)
        for k in (0, 2):
            A(f"v_pk_fma_f32 {vr(U0+k,2)}, {vr(U0+k,2)}, {vr(T+4+k,2)}, {vr(RA+k,2)}")
        for k in (0, 2):
            A(f"v_pk_fma_f32 {vr(U1+k,2)}, {vr(U1+k,2)}, {vr(T+12+k,2)}, {vr(RA+k,2)}")
        T_((b + 1) % NB)
        F_(b, 8 * b)
        A(f"s_sub_u32 s{SP}, s{SP}, 1")
        A(f"s_cbranch_scc1 K2_sw_{b}")
        A.label(f"K2_swr_{b}")
        E_(8 * (b + 1))
        if b == NB - 1:
            A(f"v_add_u32 v{PA}, {8*NB}, v{PA}")
        for k in (0, 2):
            A(f"v_pk_mul_f32 {vr(M+k,2)}, {vr(U0+k,2)}, {vr(U1+k,2)}")
        for k in range(4):
            A(f"v_rcp_f32 v{M+k}, v{M+k}")
        for k in (0, 2):
            A(f"v_pk_mul_f32 {vr(V0+k,2)}, {vr(U1+k,2)}, {vr(V0+k,2)}")
        for k in (0, 2):
            A(f"v_pk_fma_f32 {vr(V0+k,2)}, {vr(U0+k,2)}, {vr(V1+k,2)}, {vr(V0+k,2)}")
        for k in (0, 2):
            A(f"v_pk_add_f32 {vr(U0+k,2)}, {vr(U0+k,2)}, {vr(U1+k,2)}")
        for k in (0, 2):
            A(f"v_pk_fma_f32 {vr(NUM+k,2)}, {vr(M+k,2)}, {vr(V0+k,2)}, {vr(NUM+k,2)}")
        A(f"s_sub_u32 s{SC}, s{SC}, 1")
        for k in (0, 2):
            A(f"v_pk_fma_f32 {vr(DEN+k,2)}, {vr(M+k,2)}, {vr(U0+k,2)}, {vr(DEN+k,2)}")
        A(f"s_cbranch_scc1 K2_fs_{b}")
        A.label(f"K2_flr_{b}")
    if "v" in XP:
        A.L[nloop0:] = [l for l in A.L[nloop0:] if not any(t in l for t in ("v_pk_", "v_rcp", "v_lshlrev_b64"))]
    if "r" in XP:
        A.L[nloop0:] = [l for l in A.L[nloop0:] if not any(t in l for t in ("v_rcp",))]
    A(f"s_sub_u32 s{SR}, s{SR}, {NB}")
    A("s_cbranch_scc0 K2_loop")
    A(f"s_add_u32 s{SL}, s{SL}, 1")
    A(f"s_cmp_gt_u32 s{SL}, 1")
    A("s_cbranch_scc1 K2_ev2")
    for j in (1, 2):
        A(f"v_lshrrev_b32 v14, 2, v{OA[j]}")
        A(f"v_and_or_b32 v14, v14, s88, v{SUB16}" if False else f"v_and_b32 v14, 0xfffff000, v14")
        A(f"v_or_b32 v14, v14, v{SUB16}")
        A(f"buffer_load_dwordx4 {vr(AUN[j],4)}, v14, s[40:43], s86 offen")
    for j in range(3):
        A(f"buffer_load_dwordx2 {vr(XR[j],2)}, v{OA[j]}, s[44:47], s87 offen {CFG.get('ldx','').replace('+',' ')}")
    A(f"s_add_i32 s{SR}, s81, s{SR}")
    A(f"s_max_i32 s{SR}, s{SR}, 0")
    A("s_branch K2_loop")
    A.label("K2_ev2")
    if CFG.get("prio", 1):
        A("s_setprio 2")
        A(f"s_movk_i32 s{SR}, {PR[0]-PR[1]-1}")
        A(f"s_cmp_eq_u32 s{SL}, 2")
        A("s_cbranch_scc1 K2_loop")
        A("s_setprio 1")
        A(f"s_movk_i32 s{SR}, {PR[1]-PR[2]-1}")
        A(f"s_cmp_eq_u32 s{SL}, 3")
        A("s_cbranch_scc1 K2_loop")
        A("s_setprio 0")
    A(f"s_movk_i32 s{SR}, 0x7fff")
    A("s_branch K2_loop")

    for b in range(NB):
        A.label(f"K2_sw_{b}")
        A(f"v_subrev_u32 v{PA}, {8*(b+1)}, v{PN1}")
        A(f"v_mov_b32 v{PN1}, v{PN2}")
        A(f"v_mov_b32 v{PN2}, {DUMP}")
        A(f"s_mov_b32 s{SP}, s{SP1}")
        A(f"s_mov_b32 s{SP1}, s{SP2}")
        A(f"s_movk_i32 s{SP2}, 0x7fff")
        A(f"s_branch K2_swr_{b}")
        A.label(f"K2_fs_{b}")
        A("s_swappc_b64 s[88:89], s[90:91]")
        A(f"s_branch K2_flr_{b}")

    for j in range(3):
        A.label(f"K2_flush{j}")
        for k in (0, 2):
            A(f"v_pk_fma_f32 {vr(DEN+k,2)}, {vr(DEN+k,2)}, {vr(RA+k,2)}, s[82:83]")
        for k in (0, 2):
            A(f"v_pk_mul_f32 {vr(NUM+k,2)}, {vr(NUM+k,2)}, {vr(RA+k,2)}")
        for k in range(4):
            A(f"v_rcp_f32 v{DEN+k}, v{DEN+k}")
        for k in (0, 2):
            A(f"v_lshlrev_b64 {vr(V0+k,2)}, 16, {vr(RA+k,2)}")
        for k in (0, 2):
            A(f"v_pk_fma_f32 {vr(V0+k,2)}, {vr(NUM+k,2)}, {vr(DEN+k,2)}, {vr(V0+k,2)}")
        A(f"v_pk_mul_f32 {vr(M,2)}, {vr(V0,2)}, 0 op_sel_hi:[1,0]")
        A(f"v_pk_fma_f32 {vr(M,2)}, {vr(V0+2,2)}, 0, {vr(M,2)} op_sel_hi:[1,0,1]")
        for k in range(4):
            A(f"v_max_f32 v{V0+k}, 0, v{V0+k}")
        A(f"v_cmp_u_f32 vcc, v{M}, v{M+1}")
        for k in range(4):
            A(f"v_dot2_f32_bf16 v{V0+k}, v{XR[j]+k//2}, s{84+(k&1)}, v{V0+k}")
        if j < 2:
            for k in (0, 2):
                A(f"v_mov_b64 {vr(RA+k,2)}, {vr(AUN[j+1]+k,2)}")
            A(f"s_mov_b32 s{SC}, s{74+j}")
        else:
            A("s_nop 2")
        A(f"v_cvt_pk_bf16_f32 v{V1}, v{V0}, v{V0+1}")
        A(f"v_cvt_pk_bf16_f32 v{V1+1}, v{V0+2}, v{V0+3}")
        if not XP:
            A("s_cbranch_vccnz K2_slow_local")
        A(f"buffer_store_dwordx2 {vr(V1,2)}, v{OA[j]}, s[48:51], s87 offen {CFG.get('sto','').replace('+',' ')}")
        if j == 2:
            break
        if j == 1:
            A("s_cmp_lt_u32 s3, 8")
            A("s_cbranch_scc1 K2_end")
        if CFG["stamps"]:
            A(f"s_memrealtime s[{24+2*j}:{25+2*j}]")
        for k in (0, 2):
            A(f"v_mov_b64 {vr(DEN+k,2)}, 0")
            A(f"v_mov_b64 {vr(NUM+k,2)}, 0")
        A(f"s_add_u32 s90, s90, K2_flush{j+1}-K2_flush{j}")
        A("s_addc_u32 s91, s91, 0")
        A("s_setpc_b64 s[88:89]")
    A.label("K2_end")
    ST(A, "last")
    if CFG["stamps"]:
        A("s_waitcnt vmcnt(0)")
        ST.used += [("fl0", 24), ("fl1", 26)]
    ST.dump(A, 1)
    A.label("K2_exit")
    A("s_endpgm")

    A.label("K2_nosort")
    A("s_cmp_ge_u32 s3, 12")
    A("s_cbranch_scc0 K2_sorted")
    if CFG.get("pfx", 0):
        A("s_sub_u32 s61, s3, 12")
        A("s_mul_i32 s61, s61, 80")
        A("v_add_u32 v14, s61, v2")
        A("v_lshlrev_b32 v14, 14, v14")
        A("s_add_u32 s61, s87, 0x100000")
        A("buffer_load_dword v125, v14, s[44:47], s87 offen")
        A("s_mov_b64 exec, 0xffff")
        A("buffer_load_dword v125, v14, s[44:47], s61 offen")
        A("s_mov_b64 exec, -1")
    A("s_cmp_eq_u32 s3, 15")
    A("s_cbranch_scc0 K2_sorted")
    A("s_cmp_gt_u32 s65, 2048+7*128")
    A("s_cbranch_scc1 K2_sorted")
    A(f"s_waitcnt vmcnt({(1 if CFG.get('pf',2) else 0) + CFG.get('pfau',0) + 2*CFG.get('pfx',0)})")

    def flagchk(tag):
        A(f"v_or3_b32 v{E2R}, v{E2R}, v{E2R+1}, v{E2R+2}")
        A(f"v_or_b32 v{E2R}, v{E2R}, v{E2R+3}")
        A(f"v_cmp_ne_u32 vcc, 0, v{E2R}")
        A("s_bitset0_b32 vcc_hi, 31")
        A("s_cmp_eq_u64 vcc, 0")
        A(f"s_cbranch_scc1 K2_fl_{tag}")
        A(f"ds_write_b32 v8, v41 offset:{L_FLAG}")
        A.label(f"K2_fl_{tag}")
    flagchk("a")
    A("s_branch K2_sorted")
    A.label("K2_late_e2")
    A("s_waitcnt vmcnt(0)")
    A("s_cmp_eq_u32 s3, 15")
    A("s_cbranch_scc0 K2_fl_b")
    flagchk("b")
    A(f"buffer_load_dwordx4 {vr(E2R,4)}, v12, s[32:35], s60 offen")
    A("s_waitcnt vmcnt(0)")
    A("s_branch K2_e2go")

    A.label("K2_slow")
    A("v_lshrrev_b32 v1, 3, v2")
    A("s_sub_u32 s61, 15, s3")
    A("s_lshl_b32 s61, s61, 3")
    A("v_add_u32 v1, s61, v1")
    for j in range(3):
        A(f"v_add_u32 v{OA[j]}, {128*j}, v1")
        A(f"v_lshl_add_u32 v{OA[j]}, v{OA[j]}, 14, v{SUB8}")
    A.label("K2_slow_local")
    A("s_load_dwordx16 s[4:19], s[0:1], 0")
    A("s_waitcnt vmcnt(0) lgkmcnt(0)")
    WC = 64
    A(f"buffer_load_dwordx2 v[30:31], v{SUB8}, s[28:31], s63 offen")
    srd(A, 68, S_DST, S_DST + 1, 640000)
    A("v_lshlrev_b32 v13, 4, v2")
    A("s_cmp_lt_u32 s3, 8")
    A("s_cselect_b32 s79, 2, 3")
    A("s_waitcnt vmcnt(0)")
    A(f"v_lshlrev_b32 v{WC}, 16, v30")
    A(f"v_and_b32 v{WC+1}, 0xffff0000, v30")
    A(f"v_lshlrev_b32 v{WC+2}, 16, v31")
    A(f"v_and_b32 v{WC+3}, 0xffff0000, v31")
    for k in range(4):
        A(f"v_mul_f32 v{WC+k}, {hex(NLOG2E)}, v{WC+k}")

    def decode(dst, src):
        for k in range(4):
            A(f"v_and_b32 v40, 0xffff0000, v{src+k}")
            A("v_log_f32 v40, v40")
            A(f"v_lshlrev_b32 v41, 1, v{src+k}")
            A("v_and_b32 v41, 0x80000000, v41")
            A(f"v_and_b32 v42, 0x3fff0000, v{src+k}")
            A("v_or3_b32 v41, v41, v42, 2.0")
            A(f"v_cmp_gt_i32 vcc, 0, v{src+k}")
            A("s_nop 1")
            A(f"v_cndmask_b32 v{dst+k}, v40, v41, vcc")

    TA, NODE, DS, GG = 68, 72, 76, 80
    A.label("K2_s_chunk")
    A(f"v_lshrrev_b32 v{NODE}, 14, v{OA[0]}")
    A(f"v_lshl_add_u32 v14, v{NODE}, 12, v{SUB16}")
    A(f"buffer_load_dwordx4 {vr(RA,4)}, v14, s[40:43], s86 offen")
    A(f"buffer_load_dwordx2 {vr(XR[0],2)}, v{OA[0]}, s[44:47], s87 offen")
    A(f"v_lshl_add_u32 v{NODE}, v{NODE}, 5, s53")
    for k in range(4):
        A(f"v_mov_b32 v{DEN+k}, 0")
        A(f"v_mov_b32 v{NUM+k}, 0")
    A("s_waitcnt vmcnt(0)")
    decode(TA, RA)
    A("s_mov_b32 s75, 0")
    A.label("K2_s_blk")
    A(f"buffer_load_dwordx4 {vr(DS,4)}, v13, s[68:71], s75 offen")
    A("s_mov_b32 s74, 0")
    A("s_waitcnt vmcnt(0)")
    A.label("K2_s_comp")
    A(f"v_and_b32 v1, 31, v{DS}")
    A("v_cmp_eq_u32 s[76:77], s53, v1")
    A("s_nop 1")
    A.label("K2_s_edge")
    A("s_cmp_eq_u64 s[76:77], 0")
    A("s_cbranch_scc1 K2_s_comp_done")
    A("s_ff1_i32_b64 s78, s[76:77]")
    A("s_bitset0_b64 s[76:77], s78")
    A(f"v_readlane_b32 s80, v{DS}, s78")
    A("s_nop 1")
    A(f"v_cmp_eq_u32 vcc, s80, v{NODE}")
    A("s_nop 1")
    A("s_cbranch_vccz K2_s_edge")
    A("s_lshl_b32 s78, s78, 4")
    A("s_add_u32 s78, s78, s75")
    A("s_add_u32 s78, s78, s74")
    A(f"s_load_dword s80, s[{S_SRC}:{S_SRC+1}], s78")
    A("s_lshr_b32 s81, s78, 3")
    A("s_lshl_b32 s81, s81, 2")
    A(f"s_load_dword s81, s[{S_E}:{S_E+1}], s81")
    A("s_mov_b64 exec, vcc")
    A("s_waitcnt lgkmcnt(0)")
    A(f"v_mov_b32 v{IX}, s80")
    A(f"buffer_load_dwordx4 {vr(GG,4)}, {vr(IX,2)}, s[36:39], 0 idxen offen")
    A("s_lshl_b32 s80, s81, 16")
    A("s_and_b32 s81, s81, 0xffff0000")
    A("s_bitcmp1_b32 s78, 2")
    A("s_cselect_b32 s80, s81, s80")
    A("s_waitcnt vmcnt(0)")
    decode(U0, GG)
    for k in range(4):
        A(f"v_sub_f32 v{U0+k}, v{U0+k}, v{TA+k}")
    for k in range(4):
        A(f"v_fma_f32 v{U0+k}, s80, v{WC+k}, v{U0+k}")
    for k in range(4):
        A(f"v_exp_f32 v{U0+k}, v{U0+k}")
    for k in range(4):
        A(f"v_lshlrev_b32 v{V0+k}, 16, v{GG+k}")
    for k in range(4):
        A(f"v_add_f32 v{U0+k}, 1.0, v{U0+k}")
    for k in range(4):
        A(f"v_rcp_f32 v{U0+k}, v{U0+k}")
    A("s_nop 0")
    for k in range(4):
        A(f"v_add_f32 v{DEN+k}, v{DEN+k}, v{U0+k}")
        A(f"v_fma_f32 v{NUM+k}, v{U0+k}, v{V0+k}, v{NUM+k}")
    A("s_mov_b64 exec, -1")
    A("s_branch K2_s_edge")
    A.label("K2_s_comp_done")
    for k in range(3):
        A(f"v_mov_b32 v{DS+k}, v{DS+k+1}")
    A("s_add_u32 s74, s74, 4")
    A("s_cmp_lt_u32 s74, 16")
    A("s_cbranch_scc1 K2_s_comp")
    A("s_add_u32 s75, s75, 1024")
    A("s_cmp_lt_u32 s75, 640000")
    A("s_cbranch_scc1 K2_s_blk")
    for k in range(4):
        A(f"v_add_f32 v{DEN+k}, {hex(f32(1e-6))}, v{DEN+k}")
    for k in range(4):
        A(f"v_rcp_f32 v{DEN+k}, v{DEN+k}")
    for k in range(4):
        A(f"v_lshlrev_b32 v{V0+k}, 16, v{RA+k}")
    A(f"v_lshlrev_b32 v{V1}, 16, v{XR[0]}")
    A(f"v_and_b32 v{V1+1}, 0xffff0000, v{XR[0]}")
    A(f"v_lshlrev_b32 v{V1+2}, 16, v{XR[0]+1}")
    A(f"v_and_b32 v{V1+3}, 0xffff0000, v{XR[0]+1}")
    for k in range(4):
        A(f"v_fma_f32 v{V0+k}, v{NUM+k}, v{DEN+k}, v{V0+k}")
        A(f"v_mul_f32 v40, 0, v{V0+k}")
        A(f"v_cmp_lt_f32 vcc, 0, v{V0+k}")
        A("s_nop 1")
        A(f"v_cndmask_b32 v{V0+k}, v40, v{V0+k}, vcc")
        A(f"v_add_f32 v{V0+k}, v{V0+k}, v{V1+k}")
    A(f"v_cvt_pk_bf16_f32 v{V1}, v{V0}, v{V0+1}")
    A(f"v_cvt_pk_bf16_f32 v{V1+1}, v{V0+2}, v{V0+3}")
    A(f"buffer_store_dwordx2 {vr(V1,2)}, v{OA[0]}, s[48:51], s87 offen")
    A("s_waitcnt vmcnt(0)")
    A(f"v_mov_b32 v{OA[0]}, v{OA[1]}")
    A(f"v_mov_b32 v{OA[1]}, v{OA[2]}")
    A("s_sub_u32 s79, s79, 1")
    A("s_cmp_lg_u32 s79, 0")
    A("s_cbranch_scc1 K2_s_chunk")
    A("s_endpgm")
    A.label("K2_code_end")
    return LDS_TOTAL


def desc(name, vgpr, sgpr=102):
    return f""".amdhsa_kernel {name}
  .amdhsa_next_free_vgpr {vgpr}
  .amdhsa_next_free_sgpr {sgpr}
  .amdhsa_accum_offset {vgpr}
  .amdhsa_group_segment_fixed_size 0
  .amdhsa_kernarg_size 96
  .amdhsa_user_sgpr_count 2
  .amdhsa_user_sgpr_kernarg_segment_ptr 1
  .amdhsa_system_sgpr_workgroup_id_x 1
.end_amdhsa_kernel"""


def main():
    A = Asm()
    A.L.append(f".globl {K1}\n.p2align 12\n.p2align 8\n.type {K1},@function")
    gen_k1(A)
    A.L.append(f".globl {K2}\n.p2align 12\n.p2align 8\n.type {K2},@function")
    lds2 = gen_k2(A)
    hdr = open("cdna_kernels/" + NAME + ".s.ref").read().split("\n")
    head = [l for l in hdr if l.startswith(";") and "@launch" not in l]
    out = head + [
        f"; @launch kernel={K1} grid=(256,1,1) block=(576,1,1) lds={K1_LDS}",
        f"; @launch kernel={K2} grid=(256,1,1) block=(1024,1,1) lds={lds2}",
        '.amdgcn_target "amdgcn-amd-amdhsa--gfx950"',
        ".text",
        f".set CODE_LIM, (K2_code_end - K1_pc - 64)",
    ] + A.L + ['.section .rodata,"a"', ".p2align 6", desc(K1, 128), ".p2align 6", desc(K2, 128), ""]
    open(sys.argv[1], "w").write("\n".join(out))


main()
```

```python
import sys, struct

NAME = "standalone__edge_featured_mpnn_gatedgcn__graph"
K1 = "gcn_prep_kernel"
K2 = "gcn_aggr_kernel"

ROWS = 10248
SS = ROWS * 128
OFF_BV = 0
OFF_AU = 8 * SS
OFF_FL = 16 * SS
OFF_ENDS = OFF_FL + 8192
OFF_BINS = 0x1500000
BINSTRIDE = 0x140000
HALF = 0xA0000
DUMMY_ROW = 10240
WS_BYTES = 0x10000000

def f32(x):
    return struct.unpack("<I", struct.pack("<f", x))[0]

NLOG2E = f32(-1.4426950408889634)
CFG = dict(P=3, NB=3, st1="sc1", stamps=0)
for a in sys.argv[2:]:
    k, v = a.split("=")
    CFG[k] = int(v) if v.lstrip("-").isdigit() else v


WSO = CFG.get("wso", 0) << 20
WS_BYTES -= WSO
def wsfix(A):
    if WSO:
        A(f"s_add_u32 s26, s26, {hex(WSO)}")
        A("s_addc_u32 s27, s27, 0")


class Asm:
    def __init__(self):
        self.L = []
        self.vm = []
        self.lg = []
        self.n = 0

    def __call__(self, s):
        for line in s.strip().split("\n"):
            line = line.strip()
            if not line:
                continue
            self.L.append("    " + line if not line.endswith(":") else line)
            if not line.endswith(":") and not line.startswith(";") and not line.startswith("."):
                self.n += 1

    def label(self, l):
        self.L.append(l + ":")

    def vmem(self, s, tag=None):
        self(s)
        self.vm.append(tag)

    def lds(self, s, tag=None):
        self(s)
        self.lg.append(tag)

    def _cnt(self, lst, tag):
        idx = [i for i, t in enumerate(lst) if t == tag]
        if not idx:
            return None
        return len(lst) - 1 - idx[-1]

    def wait(self, vm=None, lg=None):
        parts = []
        if vm is not None:
            n = self._cnt(self.vm, vm)
            if n is not None:
                self.vm = self.vm[len(self.vm) - n:] if n else []
                parts.append(f"vmcnt({min(n, 63)})")
        if lg is not None:
            n = self._cnt(self.lg, lg)
            if n is not None:
                self.lg = self.lg[len(self.lg) - n:] if n else []
                parts.append(f"lgkmcnt({min(n, 15)})")
        if parts:
            self("s_waitcnt " + " ".join(parts))

    def wait_all(self, vm=False, lg=False):
        parts = []
        if vm:
            self.vm = []
            parts.append("vmcnt(0)")
        if lg:
            self.lg = []
            parts.append("lgkmcnt(0)")
        self("s_waitcnt " + " ".join(parts))


def vr(a, n=1):
    return f"v{a}" if n == 1 else f"v[{a}:{a + n - 1}]"


def sr(a, n=1):
    return f"s{a}" if n == 1 else f"s[{a}:{a + n - 1}]"


def srd(A, s, lo, hi, nrec, stride=0):
    A(f"s_mov_b32 s{s}, s{lo}")
    if stride:
        A(f"s_or_b32 s{s+1}, s{hi}, {hex(stride << 16)}")
    else:
        A(f"s_mov_b32 s{s+1}, s{hi}")
    A(f"s_mov_b32 s{s+2}, {hex(nrec)}")
    A(f"s_mov_b32 s{s+3}, 0x00020000")


S_X, S_E, S_SRC, S_DST, S_WA, S_WB, S_WC, S_WU, S_WV, S_OUT, S_DBG, S_WS = range(4, 28, 2)


OFF_ST = 0x8000000
class Stamps:
    def __init__(self, pool):
        self.pool = list(pool)
        self.used = []
    def __call__(self, A, name):
        if not CFG["stamps"]:
            return
        if name in [n for n, _ in self.used]:
            r = dict(self.used)[name]
        else:
            r = self.pool.pop(0)
            self.used.append((name, r))
        A(f"{'s_memtime' if name.startswith('clk') else 's_memrealtime'} s[{r}:{r+1}]")
    def dump(self, A, kern):
        if not CFG["stamps"]:
            return
        self(A, "end")
        self(A, "clk1")
        A("s_mov_b64 exec, -1")
        A("v_mov_b32 v1, 0")
        A("s_waitcnt lgkmcnt(0)")
        for k, (n, r) in enumerate(self.used):
            A(f"v_writelane_b32 v1, s{r}, {k}")
        A("v_mbcnt_lo_u32_b32 v2, -1, 0")
        A("v_lshlrev_b32 v2, 2, v2")
        A("s_lshl_b32 s4, s2, 4")
        A("s_add_u32 s4, s4, s3")
        A("s_lshl_b32 s4, s4, 7")
        A(f"s_add_u32 s4, s4, {OFF_ST + kern * 0x100000}")
        A("s_mov_b64 exec, 0xffffffff")
        A("buffer_store_dword v1, v2, s[32:35], s4 offen")
        A.L.insert(0, "; STAMPS " + str(kern) + " " + ",".join(n for n, _ in self.used))
```

```python
import sys
src,dst,kind=sys.argv[1:4]
L=open(src).read().split("\n")
idx=[i for i,l in enumerate(L) if l.startswith("; @launch")]
body=[]
if kind.startswith("lat"):
    _,ko,size,stride,n,base=kind.split(":")
    grid,blk=1,64
    body=f"""
    s_load_dwordx2 s[4:5], s[0:1], {ko}
    s_cmp_lg_u32 s2, 0
    s_cbranch_scc1 probe_end
    s_mov_b32 s6, {size}
    s_mov_b32 s7, 0x00020000
    v_mov_b32 v1, {base}
    s_mov_b32 s8, {n}
    s_mov_b64 exec, 1
    s_waitcnt lgkmcnt(0)
probe_loop:
    buffer_load_dword v2, v1, s[4:7], 0 offen
    s_waitcnt vmcnt(0)
    v_and_b32 v2, 0, v2
    v_add_u32 v1, v1, v2
    v_add_u32 v1, {stride}, v1
    s_sub_u32 s8, s8, 1
    s_cmp_lg_u32 s8, 0
    s_cbranch_scc1 probe_loop
probe_end:
    s_endpgm""".split("\n")
elif kind.startswith("bw"):
    _,base,n,op=kind.split(":")
    grid,blk=256,1024
    ins=[]
    for k in range(8):
        if op=="l": ins.append(f"buffer_load_dwordx4 v[{4+4*k}:{7+4*k}], v1, s[4:7], s9 offen")
        else: ins.append(f"buffer_store_dwordx4 v[4:7], v1, s[4:7], s9 offen {'sc1' if op=='s1' else ''}")
        ins.append("s_add_u32 s9, s9, 0x400000")
    body=f"""
    s_load_dwordx2 s[4:5], s[0:1], 88
    s_cmp_ge_u32 s2, 256
    s_cbranch_scc1 probe_end
    s_mov_b32 s6, 0x10000000
    s_mov_b32 s7, 0x00020000
    v_lshlrev_b32 v1, 4, v0
    s_lshl_b32 s9, s2, 14
    s_add_u32 s9, s9, {int(base)<<20}
    s_mov_b32 s8, {n}
    v_mov_b32 v4, 0
    v_mov_b32 v5, 0
    v_mov_b32 v6, 0
    v_mov_b32 v7, 0
    s_waitcnt lgkmcnt(0)
probe_loop:
    """.split("\n")+ins+"""
    s_waitcnt vmcnt(0)
    s_sub_u32 s8, s8, 1
    s_cmp_lg_u32 s8, 0
    s_cbranch_scc1 probe_loop
probe_end:
    s_endpgm""".split("\n")
nl=[f"; @launch kernel=gcn_probe_kernel grid=({grid},1,1) block=({blk},1,1) lds=0"]
L[idx[0]:idx[0]]=nl
i=[i for i,l in enumerate(L) if l.startswith('.section .rodata')][0]
L[i:i]=[".globl gcn_probe_kernel",".p2align 8",".type gcn_probe_kernel,@function","gcn_probe_kernel:"]+body
L+=[".p2align 6",""".amdhsa_kernel gcn_probe_kernel
  .amdhsa_next_free_vgpr 40
  .amdhsa_next_free_sgpr 16
  .amdhsa_accum_offset 40
  .amdhsa_group_segment_fixed_size 0
  .amdhsa_kernarg_size 96
  .amdhsa_user_sgpr_count 2
  .amdhsa_user_sgpr_kernarg_segment_ptr 1
  .amdhsa_system_sgpr_workgroup_id_x 1
.end_amdhsa_kernel""",""]
open(dst,"w").write("\n".join(L))
```

```python
import sys
sys.path.insert(0, "work")
from gcommon import *

KN = NAME + "_kernel"
OFF_SY = 0x1410000
OFF_F2 = OFF_SY + 32768
NCLR = 9
OFF_BINS4 = 0x1500000
BLK = 5120
OFF_SOLO = 0x2000000
assert 16 * SS <= OFF_SY
L_BC, L_FW1, L_PX, L_WC1, L_FW2, L_WC2, L_CA, L_CB, L_CG, L_RDY, L_DZ, L_CP, L_FS, L_FLAG, L_SOLO = \
    0, 128, 140, 196, 144, 148, 152, 156, 160, 164, 168, 172, 176, 184, 188
L_HIST, L_WCS, L_SORT, L_STG = 256, 512, 1024, 1024
L_X = L_TAB = 6144
XT = 16 * 1040
L_Q = L_ELL = 90112
assert L_X + 5 * XT <= L_Q
LDS_TOTAL = L_Q + 65536 + 8192
L_XI = 192
L_HS, L_IDL = 200, 204
L_CNT = 2560
STR = 200
CAP = 48
GLIM = 28.0
ALL4 = 0x01010101
DUMW = 0x80000000 | DUMMY_ROW
SC = "sc1"
STO, STG_ = 60, 62
NB = CFG["NB"]


class St4:
    def __init__(self):
        self.early, self.late = [], []
        self.pe, self.pl = list(range(72, 92, 2)), list(range(92, 102, 2)) + list(range(6, 24, 2))
        self.phase = 0
    def __call__(self, A, name):
        if not CFG["stamps"]:
            return
        lst, pool = (self.early, self.pe) if self.phase == 0 else (self.late, self.pl)
        d = dict(lst)
        if name not in d:
            lst.append((name, pool.pop(0)))
            d = dict(lst)
        r = d[name]
        A(f"{'s_memtime' if name.startswith('clk') else 's_memrealtime'} s[{r}:{r+1}]")
    def flush(self, A):
        self.phase = 1
        if not CFG["stamps"]:
            return
        A("s_waitcnt lgkmcnt(0)")
        A("v_mov_b32 v126, v15" if CFG.get("tst") else "v_mov_b32 v126, 0")
        for k in range(10):
            A(f"v_writelane_b32 v126, s{72+2*k}, {k}")
    def dump(self, A):
        if not CFG["stamps"]:
            return
        self(A, "end")
        self(A, "clk1")
        A("s_mov_b64 exec, -1")
        A("s_waitcnt lgkmcnt(0)")
        for k, (n, r) in enumerate(self.late):
            A(f"v_writelane_b32 v126, s{r}, {10+k}")
        A("v_lshlrev_b32 v2, 2, v2")
        A("s_lshl_b32 s4, s2, 4")
        A("s_add_u32 s4, s4, s3")
        A("s_lshl_b32 s4, s4, 7")
        A(f"s_add_u32 s4, s4, {OFF_ST}")
        A("s_mov_b32 exec_hi, 0")
        A("buffer_store_dword v126, v2, s[32:35], s4 offen")
    def names(self):
        e = [n for n, _ in self.early] + ["-"] * (10 - len(self.early))
        return ",".join(e + [n for n, _ in self.late] + ([f"e{i}" for i in range(11)] if CFG.get("tst") else []))


uid = [0]
def spin(A, off, cmp, val, vt, vz, sleep=0, w="b32"):
    uid[0] += 1
    l = f"sp{uid[0]}"
    A.label(l)
    A(f"ds_read_{w} v{vt}, v{vz} offset:{off}")
    A(f"s_sub_u32 s{STO}, s{STO}, 1")
    A("s_cbranch_scc1 K_exit")
    A("s_waitcnt lgkmcnt(0)")
    A(f"v_readfirstlane_b32 s61, v{vt}")
    A(f"s_bitcmp1_b32 s61, {val}" if cmp == "bit" else f"s_cmp_{cmp}_u32 s61, {val}")
    if sleep:
        A(f"s_cbranch_scc1 {l}d")
        A(f"s_sleep {sleep}")
        A(f"s_branch {l}")
        A.label(l + "d")
    else:
        A(f"s_cbranch_scc0 {l}")
    A.lg = []


def wvoff(A, VW0, VW1):
    A("v_and_b32 v14, 48, v0")
    A("v_and_b32 v16, 8, v0")
    A("v_and_b32 v17, 7, v0")
    A("v_lshlrev_b32 v17, 4, v17")
    A("v_lshl_add_u32 v17, v16, 6, v17")
    A(f"v_lshl_add_u32 v{VW0}, v14, 8, v17")
    A(f"v_xor_b32 v{VW1}, 32, v{VW0}")


def rawenc(A, g, OUT, t, val):
    A("s_mov_b32 s61, 0x3fffffff")
    for r in range(4):
        A(f"v_exp_f32 v{t}, v{g+r}")
        A(f"v_cvt_pk_bf16_f32 v{t+1}, v{val+r}, v{g+r}")
        A(f"v_and_b32 v{t+2}, 0x7fffffff, v{g+r}")
        A(f"v_cmp_nge_f32 vcc, {hex(f32(GLIM))}, v{t+2}")
        A(f"v_cvt_pk_bf16_f32 v{OUT+r}, v{val+r}, v{t}")
        A(f"v_lshrrev_b32 v{t+2}, 1, v{t+1}")
        A(f"v_or_b32 v{t+2}, 0x80000000, v{t+2}")
        A(f"v_bfi_b32 v{t+1}, s61, v{t+1}, v{t+2}")
        A(f"v_cndmask_b32 v{OUT+r}, v{OUT+r}, v{t+1}, vcc")


def gen(A):
    ST = St4()
    A.label(KN)
    if CFG["stamps"]:
        for r in range(72, 102, 2):
            A(f"s_mov_b64 s[{r}:{r+1}], 0")
    ST(A, "start")
    A("s_load_dwordx16 s[4:19], s[0:1], 0")
    A("s_load_dwordx8 s[20:27], s[0:1], 64")
    A("s_cmp_ge_u32 s2, 256")
    A("s_cbranch_scc1 K_exit")
    A("v_lshrrev_b32 v1, 6, v0")
    A("v_and_b32 v0, 63, v0")
    A("v_readfirstlane_b32 s3, v1")
    A("s_and_b32 s52, s2, 7")
    A("s_lshr_b32 s53, s2, 3")
    A("s_lshl_b32 s52, s52, 3")
    A("s_lshr_b32 s54, s53, 2")
    A("s_add_u32 s52, s52, s54")
    A("s_and_b32 s53, s53, 3")
    A(f"s_mov_b32 s{STO}, {1 << 24}")
    A(f"s_mov_b32 s{STG_}, {CFG.get('tmo', 8192)}")
    A(f"s_mov_b32 s34, {hex(WS_BYTES)}")
    A("s_mov_b32 s35, 0x00020000")
    A("s_setprio 3")
    A("s_cmp_eq_u32 s3, 0")
    A("s_cbranch_scc1 K_helper")
    VW0, VW1 = 2, 15
    wvoff(A, VW0, VW1)
    A("s_lshl_b32 s63, s53, 7")
    for b in (36, 40):
        A(f"s_mov_b32 s{b+2}, 0x20000")
        A(f"s_mov_b32 s{b+3}, 0x00020000")
    A(f"s_mov_b32 s30, {10000*512}")
    A("s_mov_b32 s31, 0x00020000")
    A("s_mul_i32 s57, s52, 160*512")
    A("s_cmp_lt_u32 s3, 4")
    A("s_cbranch_scc1 K_svc")

    def dma_w4(b, tag, v0_=VW0, v1_=VW1):
        for j in range(4):
            A.vmem(f"buffer_load_dwordx4 v{v1_ if j & 1 else v0_}, s[{b}:{b+3}], s59 offen offset:{1024*j} lds", tag)

    def dma_x4(vx, so):
        for i in range(4):
            A(f"buffer_load_dwordx4 v{vx}, s[28:31], s{so} offen offset:{512*i} lds")
            if i < 3:
                A("s_add_u32 m0, m0, 528")
                A("s_nop 0")

    def wunit():
        A("s_lshl_b32 s59, s66, 14")
        A("s_lshl_b32 s61, s66, 13")
        A("s_add_u32 m0, s61, s64")
        A("s_add_u32 s59, s59, s63")
        dma_w4(36, "w")

    WB, XF, ACC = 64, 32, 16
    VT, VT7, VR, VST, VZ, VONE, VM, VTS = 3, 11, 6, 10, 4, 5, 12, 15
    VX = 7
    A("s_sub_u32 s58, s3, 4")
    A("s_and_b32 s55, s3, 3")
    A("s_lshr_b32 s54, s58, 2")
    A("v_lshrrev_b32 v12, 5, v0")
    A(f"v_and_b32 v{VX}, 31, v0")
    A(f"v_lshlrev_b32 v{VX}, 4, v{VX}")
    A(f"v_lshl_add_u32 v{VX}, v12, 13, v{VX}")
    A("s_lshl_b32 s61, s55, 11")
    A("s_add_u32 s57, s57, s61")
    A(f"s_mul_i32 s69, s55, {XT // 4}")
    A(f"s_add_u32 s69, s69, {L_X}")
    A("s_mov_b32 m0, s69")
    A("s_lshl_b32 s56, s53, 14")
    A("s_add_u32 s56, s56, s57")
    A("s_and_b32 s64, s55, 1")
    A("s_lshl_b32 s61, s64, 6")
    A(f"v_xor_b32 v{VW0}, s61, v{VW0}")
    A(f"v_xor_b32 v{VW1}, s61, v{VW1}")
    A("s_lshl_b32 s64, s64, 12")
    A(f"s_add_u32 s64, s64, {L_Q}")
    A("s_bfe_u32 s66, s2, 0x20005")
    A("s_lshl_b32 s66, s66, 1")
    A("s_lshr_b32 s61, s55, 1")
    A("s_add_u32 s66, s66, s61")
    A("s_cmp_lg_u32 s54, 0")
    A("s_cbranch_scc1 G_b0")
    A("s_bitcmp1_b32 s55, 0")
    A("s_waitcnt lgkmcnt(0)")
    ST(A, "karg")
    A(f"s_mov_b64 s[28:29], s[{S_X}:{S_X+1}]")
    A(f"s_cselect_b64 s[36:37], s[{S_WV}:{S_WV+1}], s[{S_WB}:{S_WB+1}]")
    dma_x4(VX, 56)
    wunit()
    ST(A, "t1")
    A.label("G_b0")
    A("s_barrier")
    A("v_and_b32 v11, 15, v0")
    A("v_bfe_u32 v13, v0, 4, 1")
    A(f"s_mul_i32 s61, s54, {XT}")
    A(f"s_add_u32 s61, s61, {L_X}")
    A("v_mul_u32_u24 v14, 1040, v11")
    A("v_lshl_add_u32 v14, v13, 9, v14")
    A("v_lshl_add_u32 v14, v12, 4, v14")
    A(f"v_add_u32 v{VR}, s61, v14")
    A(f"v_lshlrev_b32 v{VST}, 7, v11")
    A(f"v_lshl_add_u32 v{VST}, v13, 5, v{VST}")
    A(f"v_lshl_add_u32 v{VST}, v12, 4, v{VST}")
    if CFG.get("stp") == 1:
        A(f"v_lshrrev_b32 v{VST}, 2, v0")
        A(f"v_lshlrev_b32 v{VST}, 7, v{VST}")
        A("v_and_b32 v14, 3, v0")
        A(f"v_lshl_add_u32 v{VST}, v14, 4, v{VST}")
    if CFG.get("stp") == 2:
        A(f"v_bfe_u32 v{VST}, v0, 1, 4")
        A(f"v_lshlrev_b32 v{VST}, 7, v{VST}")
        A("v_and_b32 v14, 1, v0")
        A(f"v_lshl_add_u32 v{VST}, v14, 4, v{VST}")
        A(f"v_lshl_add_u32 v{VST}, v12, 5, v{VST}")
    if CFG.get("stp") == 3:
        A(f"v_and_b32 v{VST}, 3, v0")
        A("v_lshrrev_b32 v14, 4, v0")
        A(f"v_lshl_add_u32 v{VST}, v14, 2, v{VST}")
        A(f"v_lshlrev_b32 v{VST}, 7, v{VST}")
        A("v_bfe_u32 v14, v0, 2, 2")
        A(f"v_lshl_add_u32 v{VST}, v14, 4, v{VST}")
    A("v_bfe_u32 v14, v0, 2, 1")
    A("v_lshl_add_u32 v14, v12, 1, v14")
    A("v_and_b32 v16, 8, v0")
    A("v_add_u32 v14, v14, v16")
    A("v_lshl_add_u32 v14, v13, 5, v14")
    A("v_bfe_u32 v16, v0, 3, 2")
    A("v_xor_b32 v16, s55, v16")
    A("v_and_b32 v17, 3, v0")
    A("v_lshlrev_b32 v17, 3, v17")
    A("v_lshl_add_u32 v17, v16, 5, v17")
    A(f"v_add_u32 v17, {L_Q}, v17")
    A(f"v_lshl_add_u32 v{VT}, v14, 7, v17")
    A(f"v_add_u32 v{VT7}, {7*8192}, v{VT}")
    A(f"v_mov_b32 v{VZ}, 0")
    A(f"v_mov_b32 v{VONE}, 1")
    A("s_lshr_b32 s61, s55, 1")
    A("s_lshl_b32 s65, s53, 1")
    A("s_add_u32 s61, s61, s65")
    A(f"s_mul_i32 s71, s61, {SS}")
    A("s_mul_i32 s61, s52, 160*128")
    A("s_add_u32 s71, s71, s61")
    A("s_and_b32 s61, s55, 1")
    A("s_lshl_b32 s61, s61, 6")
    A("s_add_u32 s71, s71, s61")
    A("s_lshl_b32 s65, s53, 6")
    A("s_add_u32 s65, s65, s52")
    A("s_lshl_b32 s65, s65, 4")
    A(f"s_add_u32 s65, s65, {OFF_F2}")
    A(f"s_mov_b32 s68, {hex(NLOG2E)}")
    A("s_mov_b32 s70, 1")
    A("v_mov_b32 v1, 0x100001")
    A("s_bitcmp1_b32 s55, 0")
    A("s_waitcnt lgkmcnt(0)")
    A(f"s_mov_b64 s[32:33], s[{S_WS}:{S_WS+1}]")
    A(f"s_mov_b64 s[28:29], s[{S_X}:{S_X+1}]")
    A(f"s_cselect_b64 s[36:37], s[{S_WV}:{S_WV+1}], s[{S_WB}:{S_WB+1}]")
    A("s_cmp_eq_u32 s54, 1")
    A("s_cbranch_scc0 G_nB")
    ST(A, "karg")
    for j in range(3):
        A("s_add_u32 s66, s66, 2")
        A("s_and_b32 s66, s66, 7")
        wunit()
    A("v_mov_b32 v1, 0x100000")
    ST(A, "t1")
    A.label("G_nB")
    A("s_cmp_eq_u32 s54, 2")
    A("s_cbranch_scc0 G_nC")
    ST(A, "karg")
    A(f"s_setprio {CFG.get('cp', 2)}")
    for t in range(1, 5):
        A(f"s_add_u32 s61, s53, {t}")
        A("s_sub_u32 s56, s61, 5")
        A("s_min_u32 s61, s61, s56")
        A("s_lshl_b32 s56, s61, 14")
        A(f"s_add_u32 m0, s69, {t*XT}")
        A("s_add_u32 s56, s56, s57")
        dma_x4(VX, 56)
        if t == 3:
            A("v_mov_b32 v1, 0x10")
            A("s_mov_b64 exec, 1")
            A("s_waitcnt vmcnt(8)")
            A(f"ds_add_u32 v{VZ}, v1 offset:{L_PX}")
            A("s_mov_b64 exec, -1")
    ST(A, "t1")
    A("v_mov_b32 v1, 0x100")
    A("s_waitcnt vmcnt(8)")
    A("s_branch G_fl")
    A.label("G_nC")
    A("s_waitcnt vmcnt(0)")
    A.label("G_fl")
    A("s_mov_b64 exec, 1")
    A(f"ds_add_u32 v{VZ}, v1 offset:{L_PX}")
    A("s_mov_b64 exec, -1")
    ST(A, "t2")
    A("s_mov_b32 s59, s54")
    A("s_lshl2_add_u32 s56, s54, 2")
    A("s_add_u32 s57, s54, 1")
    A("s_cmp_eq_u32 s57, 3")
    A("s_cselect_b32 s57, 0, s57")
    A("s_mov_b32 s69, 0")
    A(f"v_mov_b32 v1, {L_WC1}")
    if CFG.get("tst"):
        A(f"v_mov_b32 v{VTS}, 0")
        A("s_mov_b32 m0, 20")
    P0 = [int(x) for x in str(CFG.get("p0", "2,1,0")).split(",")]
    A(f"s_setprio {P0[0]}")
    A("s_cmp_eq_u32 s54, 0")
    A("s_cbranch_scc1 G_w1")
    A(f"s_setprio {P0[1]}")
    A("s_cmp_eq_u32 s54, 1")
    A("s_cbranch_scc1 G_w1")
    A(f"s_setprio {P0[2]}")
    A.label("G_w1")
    spin(A, L_PX, "bit", "23", VM, VZ)
    A("s_mov_b32 s67, s61")
    ST(A, "t3")

    def xread(s, o):
        A(f"ds_read_b128 {vr(XF + 4*s, 4)}, v{VR} offset:{32*o}")

    def wread(s):
        for j in range(2):
            A(f"ds_read_b64_tr_b16 {vr(WB + 4*s + 2*j, 2)}, v{VT if s < 14 else VT7} offset:{((s>>1)%7)*8192 + (s&1)*512 + j*2048}")

    def mfma(s):
        c = "0" if s == 0 else vr(ACC, 16)
        A(f"v_mfma_f32_32x32x16_bf16 {vr(ACC,16)}, {vr(WB + 4*s, 4)}, {vr(XF + 4*(s&7), 4)}, {c}")

    A.label("G_phase")
    for s in range(16):
        wread(s)
    A("s_mov_b64 exec, 1")
    A(f"ds_add_u32 v1, v{VONE}")
    A("s_cmp_eq_u32 s54, 2")
    A("s_cbranch_scc1 G_cfl")
    A.label("G_cflr")
    A("s_mov_b64 exec, -1")
    A("s_bitcmp1_b32 s67, s56")
    A("s_cbranch_scc0 G_xw")
    A.label("G_xr")
    for s in range(8):
        xread(s, s)
    def tst():
        A(f"v_writelane_b32 v{VTS}, s92, m0")
        A("s_add_u32 m0, m0, 1")
        A("s_memtime s[92:93]" if CFG["tst"] == 2 else "s_memrealtime s[92:93]")
    if CFG.get("tst") == 3:
        tst()
    A(f"s_setprio {CFG.get('gp1', 1)}")
    if CFG.get("gal", 1):
        A.L.append(".p2align 6")
    A.label("G_loop")
    mid = {0: ["s_add_u32 s56, s59, 3", "s_cmp_gt_u32 s56, 4"],
           1: ["s_cselect_b32 s56, s57, s56", "s_sub_i32 s64, s56, s59"],
           2: [f"s_mul_i32 s64, s64, {XT}", "s_add_u32 s61, s59, s53"],
           3: ["s_cmp_gt_u32 s61, 4", "s_cselect_b32 s66, 5, 0"],
           4: ["s_sub_u32 s61, s61, s66", "s_lshl_b32 s61, s61, 12"],
           5: ["s_add_u32 s66, s71, s61", "s_mov_b32 s59, s56"],
           6: ["s_lshl2_add_u32 s56, s59, 2", f"v_readfirstlane_b32 s67, v{VM}"],
           7: [f"v_add_u32 v{VR}, s64, v{VR}"]}
    for s in range(16):
        if s % 2 == 0:
            A("s_waitcnt lgkmcnt(6)")
        mfma(s)
        if CFG.get("tst") == 3 and s in (0, 8):
            tst()
        if s == 0:
            A(f"ds_read_b32 v{VM}, v{VZ} offset:{L_PX}")
        xread(s & 7, (s + 8) & 15)
        for t in mid.get(s, []):
            A(t)
    if CFG.get("tst"):
        tst()
    A("s_nop 7")
    A("s_nop 2")
    g = ACC
    for r in range(8):
        A(f"v_mul_f32 v{g+r}, s68, v{g+r}")
    A(f"v_max3_f32 v{VM}, abs(v{g}), abs(v{g+1}), abs(v{g+2})")
    A(f"v_max3_f32 v{VM+1}, abs(v{g+3}), abs(v{g+4}), abs(v{g+5})")
    A(f"v_max3_f32 v{VM}, abs(v{g+6}), abs(v{g+7}), v{VM}")
    A(f"v_max_f32 v{VM}, v{VM}, v{VM+1}")
    A(f"v_cmp_nge_f32 vcc, {hex(f32(GLIM))}, v{VM}")
    A("s_cmp_lg_u32 s69, 0")
    A("s_nop 0")
    A("s_cbranch_vccnz G_raw")
    for r in range(8):
        A(f"v_exp_f32 v{g+r}, v{g+r}")
    for r in range(8):
        A(f"v_cvt_pk_bf16_f32 v{g+r}, v{g+8+r}, v{g+r}")
    A.label("G_rawr")
    for r in range(4):
        A(f"v_permlane16_swap_b32 v{g+r}, v{g+4+r}")
    if not CFG.get("nost"):
        A(f"buffer_store_dwordx4 {vr(g,4)}, v{VST}, s[32:35], s66 offen {CFG['st1']}")
        A(f"buffer_store_dwordx4 {vr(g+4,4)}, v{VST}, s[32:35], s66 offen offset:2048 {CFG['st1']}")
    A("s_cbranch_scc1 G_sigA")
    A.label("G_sigAr")
    if CFG.get("tst") == 3:
        tst()
    A("s_cmp_gt_u32 s59, 2")
    A("s_cbranch_scc0 G_pend")
    A("s_bitcmp1_b32 s67, s56")
    A("s_cbranch_scc1 G_loop")
    A.label("G_xw")
    spin(A, L_PX, "bit", "s56", VM, VZ, sleep=1)
    A("s_branch G_xr")
    A.label("G_cfl")
    A("s_mov_b32 s54, 3")
    A("v_mov_b32 v1, 0x1000")
    A("s_waitcnt vmcnt(4)")
    A(f"ds_add_u32 v{VZ}, v1 offset:{L_PX}")
    A(f"v_mov_b32 v{VM}, 0x10000")
    A("s_waitcnt vmcnt(0)")
    A(f"ds_add_u32 v{VZ}, v{VM} offset:{L_PX}")
    A("s_branch G_cflr")
    A.label("G_pend")
    A("s_bitcmp1_b32 s68, 31")
    A("s_cbranch_scc0 G_done")
    ST(A, "t4")
    A("s_bitset0_b32 s68, 31")
    A(f"s_add_u32 s71, s71, {OFF_AU}")
    A("s_mov_b32 s69, 1")
    A(f"v_mov_b32 v1, {L_WC2}")
    A(f"v_add_u32 v{VT7}, 8192, v{VT7}")
    spin(A, L_FW2, "eq", "3", VM, VZ, sleep=1)
    ST(A, "t5")
    A(f"s_setprio {CFG.get('gp0', 2)}")
    A("s_branch G_phase")
    A.label("G_raw")
    A("s_mov_b32 s70, 0x10001")
    rawenc(A, g, g, VM, g + 8)
    rawenc(A, g + 4, g + 4, VM, g + 12)
    A("s_branch G_rawr")
    A.label("G_sigA")
    A("s_waitcnt vmcnt(2)")
    A("s_mov_b64 exec, 1")
    A(f"ds_add_rtn_u32 v{VM}, v{VZ}, v{VONE} offset:{L_CA}")
    A("s_mov_b32 s69, 0")
    A("s_waitcnt lgkmcnt(0)")
    A(f"v_readfirstlane_b32 s61, v{VM}")
    A("s_cmp_eq_u32 s61, 11")
    A("s_cbranch_scc0 G_sigA2")
    spin(A, L_RDY, "lg", "0", VM, VZ)
    A(f"buffer_store_dword v{VONE}, v{VZ}, s[32:35], s65 offen {SC}")
    A.label("G_sigA2")
    A("s_mov_b64 exec, -1")
    A("s_branch G_sigAr")

    A.label("G_done")
    if CFG.get("tst"):
        A("s_waitcnt lgkmcnt(0)")
        A(f"v_writelane_b32 v{VTS}, s92, m0")
    ST(A, "t6")
    A("s_mov_b64 exec, 1")
    A(f"ds_add_u32 v{VZ}, v{VONE} offset:{L_CG}")
    A("s_mov_b64 exec, -1")
    A("s_setprio 0")
    spin(A, L_RDY, "lg", "0", VM, VZ)
    A("s_cmp_lt_u32 s58, 8")
    A("s_cbranch_scc0 G_notab")
    WSL, FK, TV = 100, 24, 64
    A("v_and_b32 v11, 7, v0")
    A("v_lshlrev_b32 v11, 4, v11")
    A(f"ds_read_b128 {vr(WSL,4)}, v11 offset:{L_WCS}")
    A("s_lshl_b32 s61, s58, 2")
    A("v_lshrrev_b32 v12, 4, v0")
    A("v_add_u32 v12, s61, v12")
    A("v_and_b32 v13, 8, v0")
    A("v_cmp_ne_u32 vcc, 0, v13")
    A("v_subrev_u32 v14, 128, v12")
    A("v_lshlrev_b32 v14, 8, v14")
    A("v_cndmask_b32 v14, v14, v12, vcc")
    A(f"v_cvt_f32_i32 v{FK}, v14")
    A(f"v_mov_b32 v13, {hex(f32(8192.0))}")
    A(f"v_mov_b32 v14, {hex(f32(32.0))}")
    A("v_cndmask_b32 v13, v13, v14, vcc")
    for k in range(1, 8):
        A(f"v_add_f32 v{FK+k}, v{FK+k-1}, v13")
    A("s_lshl_b32 s61, s58, 10")
    A(f"s_add_u32 s61, s61, {L_TAB}")
    A("v_lshl_add_u32 v11, v0, 4, s61")
    A("s_waitcnt lgkmcnt(0)")
    for k in range(8):
        f = vr(FK + (k & ~1), 2)
        sel = "op_sel:[0,1] op_sel_hi:[1,1]" if k & 1 else "op_sel_hi:[1,0]"
        for c in (0, 2):
            A(f"v_pk_mul_f32 {vr(TV+4*k+c,2)}, {vr(WSL+c,2)}, {f} {sel}")
    for k in range(32):
        A(f"v_exp_f32 v{TV+k}, v{TV+k}")
    A.label("G_notab")
    A("v_mov_b32 v1, s70")
    A("s_waitcnt vmcnt(0)")
    ST(A, "t7")
    A("s_mov_b64 exec, 1")
    A(f"ds_add_rtn_u32 v{VM}, v{VZ}, v1 offset:{L_CB}")
    A("s_waitcnt lgkmcnt(0)")
    A(f"v_readfirstlane_b32 s61, v{VM}")
    A("s_add_u32 s61, s61, s70")
    A("s_and_b32 s64, s61, 0xffff")
    A("s_cmp_eq_u32 s64, 12")
    A("s_cbranch_scc0 G_sigB2")
    A("s_or_b32 s61, s61, 3")
    A("v_mov_b32 v1, s61")
    A(f"buffer_store_dword v1, v{VZ}, s[32:35], s65 offen {SC}")
    A.label("G_sigB2")
    A("s_mov_b64 exec, -1")
    A("s_cmp_lt_u32 s58, 8")
    A("s_cbranch_scc0 K_setup")
    spin(A, L_CG, "eq", "12", VM, VZ, sleep=1)
    for k in range(8):
        A(f"ds_write_b128 v11, {vr(TV+4*k,4)} offset:{8192*k}")
    ST(A, "t8")
    A("s_branch K_setup")

    A.label("K_svc")
    A("s_getpc_b64 s[66:67]")
    A.label("K_pc")
    A("v_mov_b64 v[4:5], 0")
    A("v_lshlrev_b32 v13, 4, v0")
    A("v_lshlrev_b32 v12, 6, v0")
    A("s_cmp_eq_u32 s3, 1")
    A("s_cbranch_scc1 K_svc1")
    A("v_mov_b64 v[6:7], 0")
    A("s_mov_b32 exec_hi, 0")
    A("ds_write_b128 v13, v[4:7]")
    A("s_mov_b64 exec, -1")
    A("s_sub_u32 s58, s3, 2")
    A("s_lshl_b32 s64, s58, 12")
    A(f"s_add_u32 s64, s64, {L_Q}")
    A("v_add_u32 v14, s64, v13")
    A("v_mov_b32 v1, s58")
    A("s_lshl_b32 s61, s58, 6")
    A(f"v_xor_b32 v{VW0}, s61, v{VW0}")
    A(f"v_xor_b32 v{VW1}, s61, v{VW1}")
    A("s_lshr_b32 s61, s2, 3")
    A("s_lshl_b32 s61, s61, 12")
    A("s_cmp_eq_u32 s3, 2")
    A("s_waitcnt lgkmcnt(0)")
    ST(A, "karg")
    A(f"s_cselect_b64 s[36:37], s[{S_WA}:{S_WA+1}], s[{S_WU}:{S_WU+1}]")
    A(f"s_mov_b64 s[32:33], s[{S_WS}:{S_WS+1}]")
    if CFG.get("pw2", 1):
        A("buffer_load_dword v10, v12, s[36:39], s61 offen")
    A("s_cbranch_scc1 S23_b0")
    A(f"s_cmp_lt_u32 s2, {NCLR}")
    A("s_cbranch_scc0 S23_b0")
    A("s_lshl_b32 s61, s2, 12")
    A(f"s_add_u32 s61, s61, {OFF_SY}")
    for k in range(4):
        A(f"buffer_store_dwordx4 v[4:7], v13, s[32:35], s61 offen offset:{1024*k} {SC}")
    A("s_barrier")
    srd(A, 28, S_DBG, S_DBG + 1, 256)
    A("s_lshl_b32 s61, s2, 2")
    A("v_mov_b32 v5, 1")
    A("s_mov_b64 exec, 1")
    A("s_waitcnt vmcnt(0)")
    A(f"buffer_store_dword v5, v4, s[28:31], s61 offen {SC}")
    A("s_mov_b64 exec, -1")
    A("s_branch S23_b1")
    A.label("S23_b0")
    A("s_barrier")
    A.label("S23_b1")
    A(f"s_setprio {CFG.get('lp', 1)}")
    A("v_mov_b32 v5, 1")
    A("s_mov_b32 s59, s63")
    spin(A, L_PX, "bit", str(CFG.get("gate", 2)), 8, 4, sleep=1)
    ST(A, "t1")
    A.vm = []
    for blk in range(5):
        for j in range(4):
            A.vmem(f"buffer_load_dwordx4 {vr(16 + 16*blk + 4*j, 4)}, v{VW1 if j & 1 else VW0}, s[36:39], s59 offen offset:{1024*j}", f"p{blk}{j}")
        if blk < 4:
            A("s_add_u32 s59, s59, 16384")
    A("v_lshlrev_b32 v12, 1, v12")
    for k in range(CFG.get("npf", 2)):
        A(f"v_add_u32 v9, {16384*k}, v12")
        A("v_lshl_add_u32 v9, v1, 13, v9")
        A("v_min_u32 v9, CODE_LIM, v9")
        A.vmem(f"global_load_dword v{10+k}, v9, s[66:67]")
    A(f"s_setprio {CFG.get('wp', 0)}")
    spin(A, L_WC1, "eq", "12", 8, 4, sleep=1)
    ST(A, "t2")
    for blk in range(5):
        for j in range(4):
            A.wait(vm=f"p{blk}{j}")
            A(f"ds_write_b128 v14, {vr(16 + 16*blk + 4*j, 4)} offset:{8192*blk + 1024*j}")
    A.label("S_w2d")
    A("s_mov_b64 exec, 1")
    A(f"ds_add_u32 v4, v5 offset:{L_FW2}")
    A("s_mov_b64 exec, -1")
    A("s_setprio 3")
    ST(A, "t3")
    A("s_branch S_rank")

    A.label("K_svc1")
    WCR, WM, WF = 24, 16, 20
    A("v_lshlrev_b32 v11, 3, v0")
    A("s_mov_b32 s50, 512")
    A("s_mov_b32 s51, 0x00020000")
    A("s_lshl_b32 s56, s53, 12")
    A("s_add_u32 s56, s56, s57")
    A(f"s_add_u32 s56, s56, {128*512}")
    A("v_mov_b32 v5, 1")
    A("s_waitcnt lgkmcnt(0)")
    ST(A, "karg")
    A(f"s_mov_b64 s[48:49], s[{S_WC}:{S_WC+1}]")
    A(f"s_mov_b64 s[28:29], s[{S_X}:{S_X+1}]")
    A(f"buffer_load_dwordx2 {vr(WCR,2)}, v11, s[48:51], 0 offen")
    if CFG.get("px4", 1):
        A("buffer_load_dword v10, v12, s[28:31], s56 offen")
    A("s_barrier")
    A(f"s_mov_b64 s[32:33], s[{S_WS}:{S_WS+1}]")
    A(f"s_mov_b64 s[36:37], s[{S_WA}:{S_WA+1}]")
    A(f"s_mov_b64 s[40:41], s[{S_WU}:{S_WU+1}]")
    A("s_mov_b32 s61, 0x7fff7fff")
    A("s_and_b32 s64, s2, 7")
    A("s_lshl_b32 s64, s64, 3")
    A("v_and_b32 v1, 0x70, v13")
    A(f"v_add_u32 v14, {L_Q}, v13")
    A(f"v_xor_b32 v6, 64, v{VW0}")
    A(f"v_xor_b32 v7, 64, v{VW1}")
    A(f"s_mov_b32 m0, {L_Q + 65536}")
    A(f"s_add_u32 s59, s63, {7*16384}")
    A(f"s_waitcnt vmcnt({1 if CFG.get('px4', 1) else 0})")
    A(f"v_and_b32 v{WM}, s61, v{WCR}")
    A(f"v_and_b32 v{WM+1}, s61, v{WCR+1}")
    A(f"v_pk_max_u16 v{WM}, v{WM}, v{WM+1}")
    A(f"v_lshlrev_b32 v{WM+1}, 16, v{WM}")
    A(f"v_max_u32 v{WM}, v{WM}, v{WM+1}")
    fill = [f"v_lshlrev_b32 v{WF}, 16, v{WCR}", f"v_and_b32 v{WF+1}, 0xffff0000, v{WCR}",
            f"v_lshlrev_b32 v{WF+2}, 16, v{WCR+1}", f"v_and_b32 v{WF+3}, 0xffff0000, v{WCR+1}"]
    for dpp in ["row_shr:1", "row_shr:2", "row_shr:4", "row_shr:8", "row_bcast:15 row_mask:0xa", "row_bcast:31 row_mask:0xc"]:
        rm = "" if "row_mask" in dpp else " row_mask:0xf"
        if fill:
            A(fill.pop(0))
            A(fill.pop(0))
        else:
            A("s_nop 1")
        A(f"v_max_u32_dpp v{WM}, v{WM}, v{WM} {dpp}{rm} bank_mask:0xf")
    A(f"v_and_b32 v{WM}, 0xffff0000, v{WM}")
    A(f"v_max_u32 v{WM}, {hex(f32(2.0**-60))}, v{WM}")
    A(f"v_mul_f32 v{WM}, {hex(f32(1.4426950408889634*1024))}, v{WM}")
    A("s_mov_b32 exec_lo, 0")
    A("s_mov_b32 exec_hi, 0x80000000")
    A(f"ds_write_b32 v4, v{WM} offset:{L_IDL}")
    A(f"v_readlane_b32 s61, v{WM}, 63")
    A("s_lshl_b64 exec, 0xff, s64")
    A("s_nop 0")
    A(f"v_rcp_f32 v{WM+1}, s61")
    A("s_nop 0")
    A(f"v_mul_f32 v{WM+1}, {hex(NLOG2E)}, v{WM+1}")
    for k in range(4):
        A(f"v_mul_f32 v{WF+k}, v{WM+1}, v{WF+k}")
    A(f"ds_write_b128 v1, {vr(WF,4)} offset:{L_WCS}")
    A("s_mov_b64 exec, -1")
    A(f"s_setprio {CFG.get('lp', 1)}")
    spin(A, L_PX, "bit", str(CFG.get("gate", 2)), 8, 4, sleep=1)
    ST(A, "t1")
    A.vm = []
    A(f"s_add_u32 s58, s63, {5*16384}")
    for u in range(4):
        for j in range(4):
            va = ((VW0, VW1), (6, 7))[u & 1][j & 1]
            A.vmem(f"buffer_load_dwordx4 {vr(16 + 16*u + 4*j, 4)}, v{va}, s[{36+4*(u&1)}:{39+4*(u&1)}], s58 offen offset:{1024*j}", f"p{u}{j}")
        if u == 1:
            A("s_add_u32 s58, s58, 16384")
    dma_w4(36, "w2")
    A("s_add_u32 m0, m0, 4096")
    A("s_nop 0")
    dma_w4(40, "w2", 6, 7)
    A(f"s_setprio {CFG.get('wp', 0)}")
    spin(A, L_WC1, "eq", "12", 8, 4, sleep=1)
    ST(A, "t2")
    for u in range(4):
        for j in range(4):
            A.wait(vm=f"p{u}{j}")
            A(f"ds_write_b128 v14, {vr(16 + 16*u + 4*j, 4)} offset:{5*8192 + 4096*u + 1024*j}")
    A("s_waitcnt vmcnt(0)")
    A("s_branch S_w2d")

    A.vm, A.lg = [], []
    A.label("K_helper")
    A("v_lshlrev_b32 v1, 4, v0")
    A("s_mul_i32 s56, s2, 2560")
    A("s_mul_i32 s57, s2, 1280")
    A("v_lshlrev_b32 v3, 2, v0")
    A("v_mov_b32 v4, 0")
    A("v_mov_b32 v6, 8")
    A("v_lshlrev_b32 v11, 3, v0")
    A("v_lshlrev_b32 v7, 10, v0")
    A("s_lshl_b32 s58, s2, 2")
    A(f"s_add_u32 s58, s58, {OFF_SY}")
    for b, n in ((40, 640000), (36, 640000), (44, 320000), (28, 4 * NCLR)):
        A(f"s_mov_b32 s{b+2}, {n}")
        A(f"s_mov_b32 s{b+3}, 0x00020000")
    A("s_waitcnt lgkmcnt(0)")
    ST(A, "karg")
    D, S, E, RK, W0 = 16, 26, 36, 42, 52
    A(f"s_mov_b64 s[40:41], s[{S_DST}:{S_DST+1}]")
    A.vmem(f"buffer_load_dwordx4 {vr(D,4)}, v1, s[40:43], s56 offen", "d0")
    A.vmem(f"buffer_load_dwordx4 {vr(D+4,4)}, v1, s[40:43], s56 offen offset:1024", "d4")
    A.vmem(f"buffer_load_dwordx2 {vr(D+8,2)}, v11, s[40:43], s56 offen offset:2048", "d8")
    A(f"s_mov_b64 s[36:37], s[{S_SRC}:{S_SRC+1}]")
    A(f"s_mov_b64 s[44:45], s[{S_E}:{S_E+1}]")
    A.vmem(f"buffer_load_dwordx2 {vr(E,2)}, v11, s[44:47], s57 offen", "s")
    A.vmem(f"buffer_load_dwordx2 {vr(E+2,2)}, v11, s[44:47], s57 offen offset:512", "s")
    A.vmem(f"buffer_load_dword {vr(E+4)}, v3, s[44:47], s57 offen offset:1024", "s")
    A.vmem(f"buffer_load_dwordx4 {vr(S,4)}, v1, s[36:39], s56 offen", "s")
    A.vmem(f"buffer_load_dwordx4 {vr(S+4,4)}, v1, s[36:39], s56 offen offset:1024", "s")
    A.vmem(f"buffer_load_dwordx2 {vr(S+8,2)}, v11, s[36:39], s56 offen offset:2048", "s")
    A("s_barrier")
    A(f"s_mov_b64 s[32:33], s[{S_WS}:{S_WS+1}]")
    A(f"s_mov_b64 s[28:29], s[{S_DBG}:{S_DBG+1}]")
    A(f"s_mul_i32 s59, s2, {BLK}")
    A(f"s_add_u32 s59, s59, {OFF_BINS4}")
    A(f"s_mov_b32 s65, {L_STG}")
    A("s_cmp_lt_u32 s2, 250")
    A("s_cselect_b32 s68, -1, 0")
    A("v_mov_b32 v5, 1")
    BN, EM, CI = 72, 92, 100
    A(f"v_mul_u32_u24 v{CI}, {STR}, v0")
    A(f"v_add_u32 v{CI}, {L_ELL}, v{CI}")
    for k in range(1, 6):
        A(f"v_add_u32 v{CI+k}, {64*STR*k}, v{CI}")
    A("s_mov_b32 s66, 0x7fff7fff")
    A(f"v_mov_b32 v12, {hex(f32(2.0**23 + 32768))}")
    A("s_add_u32 s67, s59, 4096")
    for k in range(10):
        A.wait(vm=f"d{k}")
        if k == 0:
            ST(A, "t1")
        A(f"v_and_b32 v{BN+k}, 31, v{D+k}")
        A(f"v_lshlrev_b32 v{BN+k}, 2, v{BN+k}")
        A(f"ds_add_rtn_u32 v{RK+k}, v{BN+k}, v6")
    A("ds_read_b32 v8, v3")
    for k in range(10):
        A(f"v_lshrrev_b32 v{W0+2*k+1}, 5, v{D+k}")
        A(f"v_lshlrev_b32 v{W0+2*k+1}, 2, v{W0+2*k+1}")
    A("s_waitcnt lgkmcnt(0)")
    A(f"ds_read_b32 v14, v4 offset:{L_IDL}")
    A("v_mov_b32 v13, v8")
    A("s_nop 1")
    for dpp in ["row_shr:1", "row_shr:2", "row_shr:4", "row_shr:8", "row_bcast:15 row_mask:0xa"]:
        rm = "" if "row_mask" in dpp else " row_mask:0xf"
        A(f"v_add_u32_dpp v13, v13, v13 {dpp}{rm} bank_mask:0xf" + (" bound_ctrl:0" if rm else ""))
        if "bcast" not in dpp:
            A("s_nop 1")
    A("v_sub_u32 v13, v13, v8")
    A("v_add_u32 v10, s65, v13")
    A("s_mov_b32 exec_hi, 0")
    A("ds_write_b32 v3, v10")
    A("s_mov_b64 exec, -1")
    for k in range(10):
        A(f"ds_read_b32 v{D+k}, v{BN+k}")
    A("s_waitcnt vmcnt(3) lgkmcnt(11)")
    A("v_readfirstlane_b32 s64, v14")
    for k in range(10):
        if k % 2 == 0:
            A(f"v_lshlrev_b32 v{W0+2*k}, 16, v{E+k//2}")
        else:
            A(f"v_and_b32 v{W0+2*k}, 0xffff0000, v{E+k//2}")
    A("s_cmp_eq_u32 s64, 0")
    A("s_cbranch_scc1 H_idl")
    A.label("H_idlr")
    for k in range(10):
        A(f"v_fma_f32 v{W0+2*k}, v{W0+2*k}, s64, v12")
    for k in range(5):
        A(f"v_and_b32 v{EM+k}, s66, v{E+k}")
    A(f"v_pk_max_u16 v{EM}, v{EM}, v{EM+1}")
    A(f"v_pk_max_u16 v{EM+2}, v{EM+2}, v{EM+3}")
    A(f"v_pk_max_u16 v{EM}, v{EM}, v{EM+4}")
    A(f"v_pk_max_u16 v{EM}, v{EM}, v{EM+2}")
    A(f"v_lshlrev_b32 v{EM+1}, 16, v{EM}")
    A(f"v_max_u32 v{EM}, v{EM}, v{EM+1}")
    A(f"v_mul_f32 v{EM}, s64, v{EM}")
    A(f"s_cmp_ge_u32 s64, {hex(f32(2.0**100))}")
    A(f"v_cmp_nge_f32 vcc, {hex(f32(32767.0))}, v{EM}")
    A("s_waitcnt vmcnt(0)")
    A.vm = []
    for k in range(10):
        A(f"v_lshl_or_b32 v{W0+2*k}, v{W0+2*k}, 16, v{S+k}")
    A("s_cselect_b64 vcc, -1, vcc")
    A("s_cmp_lg_u64 vcc, 0")
    A("s_cbranch_scc0 H_4")
    for k in range(10):
        A(f"v_mov_b32 v{W0+2*k+1}, {321*4}")
    A.label("H_4")
    A("s_waitcnt lgkmcnt(0)")
    for k in range(10):
        A(f"v_add_u32 v{D+k}, v{RK+k}, v{D+k}")
        A(f"ds_write_b64 v{D+k}, {vr(W0+2*k,2)}")
    for k in range(5):
        A(f"ds_read_b128 {vr(72+4*k,4)}, v1 offset:{L_STG + 1024*k}")
    A("v_lshl_or_b32 v9, v8, 13, v13")
    A("v_and_b32 v9, s68, v9")
    A("v_or_b32 v9, 0x80000000, v9")
    for k in range(5):
        A(f"s_waitcnt lgkmcnt({4-k})")
        A(f"buffer_store_dwordx4 {vr(72+4*k,4)}, v1, s[32:35], s{59 if k < 4 else 67} offen offset:{1024*(k&3)} {SC}")
    ST(A, "t2")
    A(f"buffer_load_dword v8, v3, s[28:31], 0 offen {SC}")
    for k in range(3):
        A(f"ds_write2st64_b32 v3, v{CI+2*k}, v{CI+2*k+1} offset0:{L_CNT//256 + 2*k} offset1:{L_CNT//256 + 2*k + 1}")
    A("s_cmp_ge_u32 s2, 8")
    A("s_cbranch_scc1 H_3")
    A("s_mov_b32 exec_hi, 0")
    A(f"s_mul_i32 s61, s2, {SS}")
    A(f"s_add_u32 s61, s61, {DUMMY_ROW*128}")
    A(f"v_mov_b32 v13, {hex(f32(2.0**64))}")
    A(f"buffer_store_dword v13, v3, s[32:35], s61 offen {SC}")
    A.label("H_3")
    A(f"s_mov_b64 exec, {(1 << NCLR) - 1}")
    A("s_waitcnt vmcnt(0)")
    ST(A, "t3")
    A.label("H_rdy")
    A("v_cmp_eq_u32 vcc, 0, v8")
    A("s_nop 0")
    A("s_cbranch_vccz H_ok")
    A(f"buffer_load_dword v8, v3, s[28:31], 0 offen {SC}")
    A(f"s_sub_u32 s{STG_}, s{STG_}, 1")
    A("s_waitcnt vmcnt(0)")
    A("s_cbranch_scc0 H_rdy")
    A(f"s_mov_b32 s{STG_}, 0")
    A(f"ds_write_b32 v4, v5 offset:{L_SOLO}")
    A("v_mov_b32 v5, 2")
    A.label("H_ok")
    A(f"ds_write_b32 v4, v5 offset:{L_RDY}")
    A("s_mov_b32 exec_lo, -1")
    A(f"buffer_store_dword v9, v7, s[32:35], s58 offen {SC}")
    A("s_mov_b64 exec, -1")
    A("v_mov_b32 v5, 1")

    A.label("S_rank")
    OF, VA, RM, EN, RKK = 8, 12, 16, 48, 24
    ENT = lambda i, r: EN + 20 * i + 4 * r
    A("s_lshr_b32 s53, s2, 3")
    A("s_and_b32 s52, s2, 7")
    A("s_lshl_b32 s56, s53, 10")
    A("s_lshl_b32 s61, s3, 8")
    A("s_add_u32 s56, s56, s61")
    A(f"s_add_u32 s56, s56, {OFF_SY}")
    A("v_and_b32 v1, 60, v0")
    A(f"v_mul_u32_u24 v2, {BLK // 4}, v1")
    A("v_and_b32 v3, 3, v0")
    A("v_lshl_add_u32 v2, v3, 4, v2")
    A("v_lshlrev_b32 v3, 1, v3")
    A(f"s_mul_i32 s57, s3, {64 * BLK}")
    A(f"s_add_u32 s57, s57, {OFF_BINS4}")
    A("v_mov_b32 v6, 4")
    spin(A, L_RDY, "lg", "0", 7, 4, sleep=2)
    A("s_cmp_eq_u32 s61, 1")
    A("s_cbranch_scc0 S_to")
    A.label("S_poll")
    for i in range(4):
        A(f"buffer_load_dword v{OF+i}, v1, s[32:35], s56 offen offset:{64*i} {SC}")
    A(f"s_sub_u32 s{STG_}, s{STG_}, 1")
    A("s_cbranch_scc1 S_to")
    A("s_waitcnt vmcnt(0)")
    A(f"v_and_b32 v7, v{OF}, v{OF+1}")
    A(f"v_and_b32 v20, v{OF+2}, v{OF+3}")
    A("v_and_b32 v7, v7, v20")
    A("v_cmp_le_i32 vcc, 0, v7")
    A("s_nop 0")
    A("s_cbranch_vccz S_go")
    A(f"s_sleep {CFG.get('slo', 4)}")
    A("s_branch S_poll")
    A.label("S_to")
    A(f"s_mov_b32 s{STG_}, 0")
    A("s_waitcnt vmcnt(0)")
    A(f"ds_write_b32 v4, v5 offset:{L_SOLO}")
    for i in range(4):
        A(f"v_mov_b32 v{OF+i}, 0")
    A.label("S_go")
    ST(A, "t4")
    A.vm = []
    for i in range(4):
        A(f"v_and_b32 v{VA+i}, 0xffff, v{OF+i}")
        A(f"v_bfe_u32 v{RM+i}, v{OF+i}, 16, 10")
        A(f"v_add_u32 v{VA+i}, v{VA+i}, v2")
        A(f"v_sub_u32 v{RM+i}, v{RM+i}, v3")
        for r in range(5):
            A(f"v_cmpx_lt_i32 vcc, {8*r}, v{RM+i}")
            A.vmem(f"buffer_load_dwordx4 {vr(ENT(i,r),4)}, v{VA+i}, s[32:35], s57 offen offset:{64*r} {SC}", f"e{i}")
        A("s_mov_b64 exec, -1")
        if i < 3:
            A(f"s_add_u32 s57, s57, {16 * BLK}")
    ST(A, "t5")
    A(f"s_mov_b32 s66, {L_ELL + 321*STR}")
    A(f"v_max3_i32 v7, v{RM}, v{RM+1}, v{RM+2}")
    A(f"v_max_i32 v7, v7, v{RM+3}")
    A("v_cmp_lt_i32 s[64:65], 40, v7")
    for i in range(4):
        A.wait(vm=f"e{i}")
        for r in range(5):
            for o in range(2):
                A(f"v_cmpx_lt_i32 vcc, {8*r+o}, v{RM+i}")
                if r == 4 and o == 0:
                    A(f"s_cbranch_execz S_rk{i}")
                A(f"ds_add_rtn_u32 v{ENT(i,r)+2*o+1}, v{ENT(i,r)+2*o+1}, v6 offset:{L_CNT}")
        A.label(f"S_rk{i}")
        A("s_mov_b64 exec, -1")
    A("s_cmp_lg_u64 s[64:65], 0")
    A("s_cbranch_scc1 S_more")
    A.label("S_ranked")
    A("s_mov_b64 exec, 1")
    A(f"ds_add_u32 v4, v5 offset:{L_CP}")
    A("s_mov_b64 exec, -1")
    ST(A, "t6")
    A("s_cmp_eq_u32 s3, 0")
    A("s_cbranch_scc1 S_sort")
    A.label("S_sorted")
    A("s_waitcnt lgkmcnt(0)")
    for i in range(4):
        for r in range(5):
            for o in range(2):
                A(f"v_min_u32 v{ENT(i,r)+2*o+1}, s66, v{ENT(i,r)+2*o+1}")
    A("v_lshlrev_b32 v21, 2, v0")
    A(f"v_add_u32 v21, {L_ELL + 320*STR}, v21")
    A(f"v_mov_b32 v22, {hex(DUMW)}")
    spin(A, L_WC2, "eq", "12", 7, 4, sleep=1)
    ST(A, "t7")
    A("s_mov_b32 exec_hi, 0xffff")
    A("ds_write_b32 v21, v22")
    A("s_mov_b64 exec, -1")
    for i in range(4):
        for r in range(5):
            for o in range(2):
                A(f"v_cmpx_lt_i32 vcc, {8*r+o}, v{RM+i}")
                if r == 4 and o == 0:
                    A(f"s_cbranch_execz S_pl{i}")
                A(f"ds_write_b32 v{ENT(i,r)+2*o+1}, v{ENT(i,r)+2*o}")
        A.label(f"S_pl{i}")
        A("s_mov_b64 exec, -1" if i < 3 else "s_mov_b64 exec, 1")
    A(f"ds_add_u32 v4, v5 offset:{L_FS}")
    A("s_mov_b64 exec, -1")
    ST(A, "t8")
    A("s_branch K_setup")
    A.label("H_idl")
    spin(A, L_IDL, "lg", "0", 14, 4)
    A("s_mov_b32 s64, s61")
    A("s_branch H_idlr")
    A.label("S_more")
    spin(A, L_WC2, "eq", "12", 7, 4, sleep=1)
    A(f"s_sub_u32 s57, s57, {48 * BLK}")
    A("s_mov_b32 s58, 4")
    for k in range(4):
        A(f"v_mov_b32 v{32+k}, v{RM+k}")
    A.label("S_m_grp")
    A(f"v_add_u32 v{VA}, 320, v{VA}")
    A("v_subrev_u32 v32, 40, v32")
    A.label("S_m_loop")
    A("v_cmpx_lt_i32 vcc, 0, v32")
    A("s_cbranch_execz S_m_next")
    A(f"buffer_load_dwordx4 v[24:27], v{VA}, s[32:35], s57 offen {SC}")
    A("s_waitcnt vmcnt(0)")
    A(f"ds_add_rtn_u32 v25, v25, v6 offset:{L_CNT}")
    A("s_waitcnt lgkmcnt(0)")
    A("v_min_u32 v25, s66, v25")
    A("ds_write_b32 v25, v24")
    A("v_cmpx_lt_i32 vcc, 1, v32")
    A(f"ds_add_rtn_u32 v27, v27, v6 offset:{L_CNT}")
    A("s_waitcnt lgkmcnt(0)")
    A("v_min_u32 v27, s66, v27")
    A("ds_write_b32 v27, v26")
    A(f"v_add_u32 v{VA}, 64, v{VA}")
    A("v_subrev_u32 v32, 8, v32")
    A("s_branch S_m_loop")
    A.label("S_m_next")
    A("s_mov_b64 exec, -1")
    for k in range(3):
        A(f"v_mov_b32 v{VA+k}, v{VA+k+1}")
        A(f"v_mov_b32 v{32+k}, v{32+k+1}")
    A(f"s_add_u32 s57, s57, {16 * BLK}")
    A("s_sub_u32 s58, s58, 1")
    A("s_cmp_lg_u32 s58, 0")
    A("s_cbranch_scc1 S_m_grp")
    A("s_branch S_ranked")
    A.label("S_sort")
    RB, DG, PS, PH = 24, 30, 36, 41
    A(f"v_mul_u32_u24 v{RB}, {STR}, v0")
    A(f"v_add_u32 v{RB}, {L_ELL}, v{RB}")
    for k in range(1, 5):
        A(f"v_add_u32 v{RB+k}, {64*STR*k}, v{RB}")
    A("v_lshlrev_b32 v3, 2, v0")
    spin(A, L_CP, "eq", "4", 7, 4)
    for k in range(5):
        A(f"ds_read_b32 v{DG+k}, v3 offset:{L_CNT + 256*k}")
    A(f"ds_read_b32 v{DG+5}, v4 offset:{L_CNT + 321*4}")
    for k in range(5):
        A(f"s_waitcnt lgkmcnt({5})")
        A(f"v_sub_u32 v{DG+k}, v{DG+k}, v{RB+k}")
        A(f"v_min_u32 v{RB+k}, {4*CAP}, v{DG+k}")
        A(f"v_sub_u32 v{PH+k}, {L_HIST + 252}, v{RB+k}")
        A(f"ds_add_rtn_u32 v{PS+k}, v{PH+k}, v6")
    A(f"ds_read_b32 v8, v3 offset:{L_HIST}")
    A(f"v_max3_u32 v9, v{DG}, v{DG+1}, v{DG+2}")
    A(f"v_max3_u32 v9, v9, v{DG+3}, v{DG+4}")
    A(f"v_cmp_lt_u32 vcc, {4*CAP}, v9")
    for k in range(5):
        A(f"v_lshlrev_b32 v{RB+k}, 14, v{RB+k}")
        A(f"v_add3_u32 v{RB+k}, v{RB+k}, v0, {64*k}" if k < 2 else f"v_add_u32 v{RB+k}, v{RB+k}, v0")
        if k >= 2:
            A(f"v_add_u32 v{RB+k}, {64*k}, v{RB+k}")
    A("s_waitcnt lgkmcnt(0)")
    A(f"v_cmp_ne_u32 s[64:65], s66, v{DG+5}")
    A("v_mov_b32 v10, v8")
    A("s_nop 0")
    A("s_or_b64 vcc, vcc, s[64:65]")
    for dpp in ["row_shr:1", "row_shr:2", "row_shr:4", "row_shr:8", "row_bcast:15 row_mask:0xa", "row_bcast:31 row_mask:0xc"]:
        rm = "" if "row_mask" in dpp else " row_mask:0xf"
        A(f"v_add_u32_dpp v10, v10, v10 {dpp}{rm} bank_mask:0xf" + (" bound_ctrl:0" if rm else ""))
        A("s_nop 1")
    A("v_sub_u32 v10, v10, v8")
    A(f"ds_write_b32 v3, v10 offset:{L_HIST}")
    for k in range(5):
        A(f"ds_read_b32 v{DG+k}, v{PH+k}")
    A("s_cbranch_scc0 S_noovf")
    A(f"ds_write_b32 v4, v5 offset:{L_FLAG}")
    A.label("S_noovf")
    A("s_waitcnt lgkmcnt(0)")
    for k in range(5):
        A(f"v_add_u32 v{DG+k}, v{DG+k}, v{PS+k}")
        A(f"ds_write_b32 v{DG+k}, v{RB+k} offset:{L_SORT}")
    A("s_branch S_sorted")

    gen_agg(A, ST)
    if CFG["stamps"]:
        A.L.insert(0, "; STAMPS 0 " + ST.names())
        A.L.insert(0, "; GROUPS 0 0-0,1-1,2-2,3-3,4-7,8-11,12-15")


def gen_agg(A, ST):
    A.label("K_setup")
    ST.flush(A)
    ST(A, "setup")
    A.vm, A.lg = [], []
    A.inloop = False
    A("s_setprio 3")
    A("s_and_b32 s52, s2, 7")
    A("s_lshr_b32 s53, s2, 3")
    A("v_mov_b32 v2, v0")
    A("v_mov_b32 v8, 0")
    SUB8 = 15
    A("v_lshlrev_b32 v13, 3, v2")
    A(f"v_and_b32 v{SUB8}, 56, v13")
    A("s_lshl_b32 s63, s52, 6")
    srd(A, 28, S_WC, S_WC + 1, 512)
    A(f"s_mul_i32 s61, s52, {SS}")
    A(f"s_add_u32 s36, s{S_WS}, s61")
    A(f"s_addc_u32 s37, s{S_WS+1}, 0")
    A(f"s_add_u32 s40, s36, {OFF_AU}")
    A(f"s_addc_u32 s41, s37, 0")
    A(f"s_or_b32 s37, s37, {hex(128 << 16)}")
    A(f"s_mov_b32 s38, {ROWS}")
    A("s_mov_b32 s39, 0x00020000")
    A(f"s_mov_b32 s42, {10000*128}")
    A("s_mov_b32 s43, 0x00020000")
    srd(A, 44, S_X, S_X + 1, 10000 * 512)
    srd(A, 48, S_OUT, S_OUT + 1, 10000 * 512)
    A("s_lshl_b32 s86, s53, 7")
    A("s_lshl_b32 s87, s53, 9")
    A("s_add_u32 s87, s87, s63")
    LC, SELA, SELB = 122, 123, 124
    A("v_and_b32 v45, 8, v2")
    A("v_cmp_ne_u32 vcc, 0, v45")
    A(f"v_mul_u32_u24 v{LC}, 0x202, v{SUB8}")
    A(f"v_or_b32 v{LC}, 0x8000, v{LC}")
    A(f"v_mov_b32 v{SELA}, 0x0c0c0700")
    A(f"v_mov_b32 v47, 0x0c0c0601")
    A(f"v_cndmask_b32 v{SELB}, v47, v{SELA}, vcc")
    A(f"v_cndmask_b32 v{SELA}, v{SELA}, v47, vcc")
    if CFG["stamps"]:
        for r in range(6, 28, 2):
            A(f"s_mov_b64 s[{r}:{r+1}], 0")
    U0, U1, V0, V1, M = 16, 20, 24, 28, 32
    T = 36
    RA, DEN, NUM = 52, 56, 60
    G = 64
    IX = 96
    Q = 100
    AUN = [RA, 108, 112]
    XR = [116, 118, 120]
    PA, PN1, PN2 = 6, 7, 9
    OA = [10, 11, 12]
    LOC = 44
    SUB16 = IX + 1
    rounds = [(0, 4, 9), (1, 2, 9), (3, 7, 9), (5, 6, 8)]
    A("s_lshr_b32 s61, s3, 2")
    A("s_lshl_b32 s61, s61, 2")
    A("s_and_b32 s64, s3, 3")
    A("s_sub_u32 s66, 3, s64")
    CH = [70, 71, 72]
    for j in range(3):
        c = sum(rounds[l][j] << (4 * l) for l in range(4))
        A(f"s_lshr_b32 s{CH[j]}, {hex(c)}, s61")
        A(f"s_and_b32 s{CH[j]}, s{CH[j]}, 15")
        A(f"s_bitcmp1_b32 s{CH[j]}, 0")
        A("s_cselect_b32 s68, s66, s64")
        A(f"s_lshl_b32 s{CH[j]}, s{CH[j]}, 2")
        A(f"s_add_u32 s{CH[j]}, s{CH[j]}, s68")
        A(f"s_lshl_b32 s{CH[j]}, s{CH[j]}, 5")
    A("v_lshrrev_b32 v1, 3, v2")
    A("v_lshlrev_b32 v1, 2, v1")
    for j in range(3):
        A(f"v_add_u32 v{LOC+j}, s{CH[j]}, v1")
    A(f"v_lshlrev_b32 v{SUB16}, 1, v{SUB8}")
    A(f"v_mov_b32 v{IX+3}, v{SUB16}")
    I0 = 16
    for k in range(2 * NB):
        A(f"v_mov_b32 v{I0+2*k+1}, v{SUB16}")
    for k in range(0, 4, 2):
        A(f"v_mov_b64 {vr(DEN+k,2)}, 0")
        A(f"v_mov_b64 {vr(NUM+k,2)}, 0")
    A(f"s_mov_b32 s82, {hex(f32(1e-6))}")
    A(f"s_mov_b32 s83, {hex(f32(1e-6))}")
    A("s_mov_b32 s84, 0x3f80")
    A("s_mov_b32 s85, 0x3f800000")
    A("s_getpc_b64 s[90:91]")
    A.label("K2_pc")
    A("s_add_u32 s90, s90, K2_flush0-K2_pc")
    A("s_addc_u32 s91, s91, 0")
    A(f"v_mov_b32 v13, {L_ELL}")
    A(f"v_lshrrev_b32 v3, 1, v{SUB8}")
    A(f"v_mov_b32 v5, {hex(DUMW)}")
    spin(A, L_FS, "eq", "4", 1, 8)
    ST(A, "BC")
    for j in range(3):
        A(f"ds_read_b32 v{LOC+j}, v{LOC+j} offset:{L_SORT}")
    A(f"s_movk_i32 s61, {STR}")
    PP = [PA, PN1, PN2]
    for j in range(3):
        A(f"s_waitcnt lgkmcnt({2-j})")
        A(f"v_readfirstlane_b32 s{73+j}, v{LOC+j}")
        A(f"v_and_b32 v{OA[j]}, 0xffff, v{LOC+j}")
        A(f"v_lshrrev_b32 v{LOC+j}, 14, v{LOC+j}")
        A(f"v_mad_u32_u24 v{PP[j]}, v{OA[j]}, s61, v13")
        A(f"v_add_u32 v{LOC+j}, v{LOC+j}, v3")
        A(f"s_add_u32 s{73+j}, s{73+j}, 0x10000")
        A(f"s_lshr_b32 s{73+j}, s{73+j}, 17")
        A(f"s_max_u32 s{73+j}, s{73+j}, {2*NB if j == 0 else 1}")
        A(f"s_lshl_b32 s{64+j}, s{73+j}, 3")
    A("s_cmp_lt_u32 s3, 8")
    A("s_cselect_b32 s66, 0, s66")
    A.label("K_pad")
    A("s_mov_b64 s[68:69], 0")
    for j in range(3):
        A(f"v_cmpx_gt_u32 vcc, s{64+j}, v{LOC+j}")
        A(f"v_add_u32 v14, v{PP[j]}, v{LOC+j}")
        A("ds_write_b32 v14, v5")
        A("s_mov_b64 exec, -1")
        A(f"v_add_u32 v{LOC+j}, 32, v{LOC+j}")
        A(f"v_cmp_gt_u32 vcc, s{64+j}, v{LOC+j}")
        A("s_or_b64 s[68:69], s[68:69], vcc")
    A("s_cbranch_scc1 K_pad")
    A.lg = []
    for b in range(NB):
        A.lds(f"ds_read_u16 v{I0+4*b}, v{PA} offset:{8*b}", f"i{b}")
        A.lds(f"ds_read_u16 v{I0+4*b+2}, v{PA} offset:{8*b+4}", f"i{b}")
        A.lds(f"ds_read_b64 {vr(Q+2*b,2)}, v{PA} offset:{8*b}", f"q{b}")

    def E_(off):
        A(f"ds_read_u16 v{IX}, v{PA} offset:{off}")
        A(f"ds_read_u16 v{IX+2}, v{PA} offset:{off+4}")

    def F_(b, off):
        A(f"ds_read_b64 {vr(Q+2*b,2)}, v{PA} offset:{off}")

    GS = CFG.get("gs", SC)
    def G_(b):
        A(f"buffer_load_dwordx4 {vr(G+8*b,4)}, {vr(IX,2)}, s[36:39], 0 idxen offen {GS}")
        A(f"buffer_load_dwordx4 {vr(G+8*b+4,4)}, {vr(IX+2,2)}, s[36:39], 0 idxen offen {GS}")

    def T_(b, rd=True, pm=True):
        if pm:
            for e in range(2):
                A(f"v_perm_b32 v{T+8*e}, v{Q+2*b+e}, v{LC}, v{SELA}")
                A(f"v_perm_b32 v{T+8*e+4}, v{Q+2*b+e}, v{LC}, v{SELB}")
        if rd:
            for k in range(4):
                A(f"ds_read_b128 {vr(T+4*k,4)}, v{T+4*k} offset:{L_TAB}")

    E_(8 * NB)
    A(f"v_add_u32 v{PA}, {8*NB}, v{PA}")
    A(f"v_lshl_add_u32 v14, v{OA[0]}, 12, v{SUB16}")
    DUMP = L_ELL + 320 * STR
    A("s_add_u32 s80, s73, s74")
    A("s_add_u32 s81, s80, s75")
    for j in range(3):
        A(f"s_sub_u32 s{73+j}, s{73+j}, 1")
    A("s_cmp_lt_u32 s3, 8")
    A("s_cselect_b32 s79, 1, 2")
    A("s_cselect_b32 s78, 0x7fff, s75")
    A("s_cselect_b32 s81, s80, s81")
    A("s_cbranch_scc0 K2_three")
    A(f"v_mov_b32 v{PN2}, {DUMP}")
    A.label("K2_three")
    SP, SP1, SP2 = 76, 77, 78
    SCN = 73
    SR, SL = 80, 72
    A(f"s_sub_u32 s{SP}, s73, {NB}")
    A(f"s_mov_b32 s{SP1}, s74")
    PR = [int(x) for x in str(CFG.get("pr", "9,6,3")).split(",")]
    A("s_lshr_b32 s61, s3, 2")
    A("s_sub_u32 s61, 3, s61")
    A(f"s_mul_i32 s61, s61, {CFG.get('stag', NB)}")
    A(f"s_sub_u32 s{SR}, s73, {2*NB-1}")
    A(f"s_min_u32 s{SR}, s{SR}, s61")
    A(f"s_sub_i32 s81, s81, s{SR}")
    A(f"s_sub_i32 s81, s81, {PR[0] + 1}")
    A(f"s_mov_b32 s{SL}, 0")
    for j in range(3):
        A(f"v_lshl_add_u32 v{OA[j]}, v{OA[j]}, 14, v{SUB8}")
    A("s_waitcnt lgkmcnt(0)")
    T_(0, rd=False)
    ST(A, "preC")
    A("s_sub_u32 s61, s3, 1")
    A("s_cmp_lt_u32 s61, 3")
    A("s_cbranch_scc1 K_fin")
    A.label("K_finr")
    A("s_barrier")
    ST(A, "C")
    A(f"buffer_load_dwordx4 {vr(RA,4)}, v14, s[40:43], s86 offen {SC}")
    for b in range(NB):
        A(f"buffer_load_dwordx4 {vr(G+8*b,4)}, {vr(I0+4*b,2)}, s[36:39], 0 idxen offen {GS}")
        A(f"buffer_load_dwordx4 {vr(G+8*b+4,4)}, {vr(I0+4*b+2,2)}, s[36:39], 0 idxen offen {GS}")
    A(f"ds_read_b64 v[4:5], v8 offset:{L_FLAG}")
    T_(0, pm=False)
    A("s_waitcnt lgkmcnt(4)")
    A("v_or_b32 v4, v4, v5")
    A("v_cmp_ne_u32 vcc, 0, v4")
    ST(A, "loop")
    ST(A, "clk0")
    A("s_nop 0")
    A("s_cbranch_vccnz K_rare")
    if CFG.get("lal", 1):
        A.L.append(".p2align 6")
    A.label("K2_loop")
    for b in range(NB):
        g0, g1 = G + 8 * b, G + 8 * b + 4
        A(f"s_waitcnt vmcnt({2*(NB-1)}) lgkmcnt(0)")
        for k in (0, 2):
            A(f"v_pk_mul_f32 {vr(U0+k,2)}, {vr(T+k,2)}, {vr(g0+k,2)}")
        for k in (0, 2):
            A(f"v_pk_mul_f32 {vr(U1+k,2)}, {vr(T+8+k,2)}, {vr(g1+k,2)}")
        for k in (0, 2):
            A(f"v_lshlrev_b64 {vr(V0+k,2)}, 16, {vr(g0+k,2)}")
            A(f"v_lshlrev_b64 {vr(V1+k,2)}, 16, {vr(g1+k,2)}")
        G_(b)
        for k in (0, 2):
            A(f"v_pk_fma_f32 {vr(U0+k,2)}, {vr(U0+k,2)}, {vr(T+4+k,2)}, {vr(RA+k,2)}")
        for k in (0, 2):
            A(f"v_pk_fma_f32 {vr(U1+k,2)}, {vr(U1+k,2)}, {vr(T+12+k,2)}, {vr(RA+k,2)}")
        T_((b + 1) % NB)
        F_(b, 8 * b)
        A(f"s_sub_u32 s{SP}, s{SP}, 1")
        A(f"s_cbranch_scc1 K2_sw_{b}")
        A.label(f"K2_swr_{b}")
        E_(8 * (b + 1))
        if b == NB - 1:
            A(f"v_add_u32 v{PA}, {8*NB}, v{PA}")
        for k in (0, 2):
            A(f"v_pk_mul_f32 {vr(M+k,2)}, {vr(U0+k,2)}, {vr(U1+k,2)}")
        for k in range(4):
            A(f"v_rcp_f32 v{M+k}, v{M+k}")
        for k in (0, 2):
            A(f"v_pk_mul_f32 {vr(V0+k,2)}, {vr(U1+k,2)}, {vr(V0+k,2)}")
        for k in (0, 2):
            A(f"v_pk_fma_f32 {vr(V0+k,2)}, {vr(U0+k,2)}, {vr(V1+k,2)}, {vr(V0+k,2)}")
        for k in (0, 2):
            A(f"v_pk_add_f32 {vr(U0+k,2)}, {vr(U0+k,2)}, {vr(U1+k,2)}")
        for k in (0, 2):
            A(f"v_pk_fma_f32 {vr(NUM+k,2)}, {vr(M+k,2)}, {vr(V0+k,2)}, {vr(NUM+k,2)}")
        A(f"s_sub_u32 s{SCN}, s{SCN}, 1")
        for k in (0, 2):
            A(f"v_pk_fma_f32 {vr(DEN+k,2)}, {vr(M+k,2)}, {vr(U0+k,2)}, {vr(DEN+k,2)}")
        A(f"s_cbranch_scc1 K2_fs_{b}")
        A.label(f"K2_flr_{b}")
    A(f"s_sub_u32 s{SR}, s{SR}, {NB}")
    A("s_cbranch_scc0 K2_loop")
    A(f"s_add_u32 s{SL}, s{SL}, 1")
    A(f"s_cmp_gt_u32 s{SL}, 1")
    A("s_cbranch_scc1 K2_ev2")
    for j in (1, 2):
        A(f"v_lshrrev_b32 v14, 2, v{OA[j]}")
        A("v_and_b32 v14, 0xfffff000, v14")
        A(f"v_or_b32 v14, v14, v{SUB16}")
        A(f"buffer_load_dwordx4 {vr(AUN[j],4)}, v14, s[40:43], s86 offen {SC}")
    for j in range(3):
        A(f"buffer_load_dwordx2 {vr(XR[j],2)}, v{OA[j]}, s[44:47], s87 offen {CFG.get('ldx','').replace('+',' ')}")
    A(f"s_add_i32 s{SR}, s81, s{SR}")
    A(f"s_max_i32 s{SR}, s{SR}, 0")
    A("s_branch K2_loop")
    A.label("K2_ev2")
    A("s_setprio 2")
    A(f"s_movk_i32 s{SR}, {PR[0]-PR[1]-1}")
    A(f"s_cmp_eq_u32 s{SL}, 2")
    A("s_cbranch_scc1 K2_loop")
    A("s_setprio 1")
    A(f"s_movk_i32 s{SR}, {PR[1]-PR[2]-1}")
    A(f"s_cmp_eq_u32 s{SL}, 3")
    A("s_cbranch_scc1 K2_loop")
    A("s_setprio 0")
    A(f"s_movk_i32 s{SR}, 0x7fff")
    A("s_branch K2_loop")

    for b in range(NB):
        A.label(f"K2_sw_{b}")
        A(f"v_subrev_u32 v{PA}, {8*(b+1)}, v{PN1}")
        A(f"v_mov_b32 v{PN1}, v{PN2}")
        A(f"v_mov_b32 v{PN2}, {DUMP}")
        A(f"s_mov_b32 s{SP}, s{SP1}")
        A(f"s_mov_b32 s{SP1}, s{SP2}")
        A(f"s_movk_i32 s{SP2}, 0x7fff")
        A(f"s_branch K2_swr_{b}")
        A.label(f"K2_fs_{b}")
        A("s_swappc_b64 s[88:89], s[90:91]")
        A(f"s_branch K2_flr_{b}")

    for j in range(3):
        A.label(f"K2_flush{j}")
        for k in (0, 2):
            A(f"v_pk_fma_f32 {vr(DEN+k,2)}, {vr(DEN+k,2)}, {vr(RA+k,2)}, s[82:83]")
        for k in (0, 2):
            A(f"v_pk_mul_f32 {vr(NUM+k,2)}, {vr(NUM+k,2)}, {vr(RA+k,2)}")
        for k in range(4):
            A(f"v_rcp_f32 v{DEN+k}, v{DEN+k}")
        for k in (0, 2):
            A(f"v_lshlrev_b64 {vr(V0+k,2)}, 16, {vr(RA+k,2)}")
        for k in (0, 2):
            A(f"v_pk_fma_f32 {vr(V0+k,2)}, {vr(NUM+k,2)}, {vr(DEN+k,2)}, {vr(V0+k,2)}")
        A(f"v_pk_mul_f32 {vr(M,2)}, {vr(V0,2)}, 0 op_sel_hi:[1,0]")
        A(f"v_pk_fma_f32 {vr(M,2)}, {vr(V0+2,2)}, 0, {vr(M,2)} op_sel_hi:[1,0,1]")
        for k in range(4):
            A(f"v_max_f32 v{V0+k}, 0, v{V0+k}")
        A(f"v_cmp_u_f32 vcc, v{M}, v{M+1}")
        for k in range(4):
            A(f"v_dot2_f32_bf16 v{V0+k}, v{XR[j]+k//2}, s{84+(k&1)}, v{V0+k}")
        if j < 2:
            for k in (0, 2):
                A(f"v_mov_b64 {vr(RA+k,2)}, {vr(AUN[j+1]+k,2)}")
            A(f"s_mov_b32 s{SCN}, s{74+j}")
        else:
            A("s_nop 2")
        A(f"v_cvt_pk_bf16_f32 v{V1}, v{V0}, v{V0+1}")
        A(f"v_cvt_pk_bf16_f32 v{V1+1}, v{V0+2}, v{V0+3}")
        A("s_cbranch_vccnz K2_slow_local")
        A(f"buffer_store_dwordx2 {vr(V1,2)}, v{OA[j]}, s[48:51], s87 offen {CFG.get('sto','').replace('+',' ')}")
        if j == 2:
            break
        if j == 1:
            A("s_cmp_lt_u32 s3, 8")
            A("s_cbranch_scc1 K2_end")
        if CFG["stamps"]:
            A(f"s_memrealtime s[{24+2*j}:{25+2*j}]")
        for k in (0, 2):
            A(f"v_mov_b64 {vr(DEN+k,2)}, 0")
            A(f"v_mov_b64 {vr(NUM+k,2)}, 0")
        A(f"s_add_u32 s90, s90, K2_flush{j+1}-K2_flush{j}")
        A("s_addc_u32 s91, s91, 0")
        A("s_setpc_b64 s[88:89]")
    A.label("K2_end")
    ST(A, "last")
    if CFG["stamps"]:
        A("s_waitcnt vmcnt(0)")
        ST.late += [("fl0", 24), ("fl1", 26)]
    ST.dump(A)
    A.label("K_exit")
    A("s_endpgm")

    A.label("K_fin")
    A("s_lshr_b32 s64, s52, 1")
    A("s_lshl_b32 s64, s64, 10")
    A(f"s_add_u32 s64, s64, {OFF_F2}")
    A("s_cmp_lt_u32 s61, 2")
    A("s_cbranch_scc1 K_pf")
    A("v_lshlrev_b32 v1, 4, v2")
    A("v_mov_b32 v5, 1")
    A(f"buffer_load_dword v3, v1, s[32:35], s64 offen {SC}")
    A.label("K_finp")
    for a, b in ((4, 3), (3, 4)):
        A(f"buffer_load_dword v{a}, v1, s[32:35], s64 offen {SC}")
        A(f"s_sub_u32 s{STG_}, s{STG_}, 1")
        A("s_cbranch_scc1 K_finto")
        A("s_waitcnt vmcnt(1)")
        A(f"v_cmp_gt_u32 vcc, 2, v{b}")
        A(f"v_cmp_lt_u32 s[66:67], 15, v{b}")
        A("s_cbranch_vccz K_fino" if a == 4 else "s_cbranch_vccnz K_finp")
    A.label("K_fino")
    A("s_cmp_lg_u64 s[66:67], 0")
    A("s_waitcnt vmcnt(0)")
    A("s_cbranch_scc0 K_finr")
    A(f"ds_write_b32 v8, v5 offset:{L_FLAG}")
    A("s_waitcnt lgkmcnt(0)")
    A("s_branch K_finr")
    A.label("K_finto")
    A(f"ds_write_b32 v8, v5 offset:{L_SOLO}")
    A("s_waitcnt vmcnt(0) lgkmcnt(0)")
    A("s_branch K_finr")
    A.label("K_pf")
    if not CFG.get("pfb", 1):
        A("s_branch K_finr")
    A("s_lshl_b32 s65, s53, 1")
    A("s_add_u32 s65, s65, s61")
    A("s_lshl_b32 s61, s65, 4")
    A("s_add_u32 s64, s64, s61")
    A(f"s_mul_i32 s66, s52, {SS}")
    A("s_mul_i32 s61, s65, 160*128")
    A("s_add_u32 s65, s66, s61")
    A("s_add_u32 s66, s65, 8192")
    A("s_add_u32 s67, s65, 16384")
    A("v_lshlrev_b32 v1, 7, v2")
    A.label("K_pfp")
    A(f"buffer_load_dword v3, v8, s[32:35], s64 offen {SC}")
    A(f"s_sub_u32 s{STG_}, s{STG_}, 1")
    A("s_waitcnt vmcnt(0)")
    A("s_cbranch_scc1 K_finr")
    A("v_readfirstlane_b32 s61, v3")
    A("s_cmp_lg_u32 s61, 0")
    A("s_cbranch_scc0 K_pfp")
    A(f"buffer_load_dword v125, v1, s[32:35], s65 offen {SC}")
    A(f"buffer_load_dword v125, v1, s[32:35], s66 offen {SC}")
    A("s_mov_b32 exec_hi, 0")
    A(f"buffer_load_dword v125, v1, s[32:35], s67 offen {SC}")
    A("s_mov_b64 exec, -1")
    A("s_branch K_finr")

    A.label("K_rare")
    A("v_cmp_ne_u32 vcc, 0, v5")
    A("s_nop 0")
    A("s_cbranch_vccz K2_slow")
    A("s_waitcnt lgkmcnt(0)")
    A("s_load_dwordx16 s[4:19], s[0:1], 0")
    A("s_load_dwordx8 s[20:27], s[0:1], 64")
    A("s_waitcnt vmcnt(0) lgkmcnt(0)")
    A("s_bitcmp1_b32 s3, 1")
    A(f"s_cselect_b64 s[64:65], s[{S_WA}:{S_WA+1}], s[{S_WB}:{S_WB+1}]")
    A(f"s_cselect_b64 s[68:69], s[{S_WU}:{S_WU+1}], s[{S_WV}:{S_WV+1}]")
    A(f"s_cselect_b32 s75, {OFF_AU}, 0")
    A("s_cselect_b32 s76, 0, 0x80000000")
    A(f"s_or_b32 s76, s76, {hex(NLOG2E & 0x7fffffff)}")
    for b in (64, 68):
        A(f"s_mov_b32 s{b+2}, 0x20000")
        A(f"s_mov_b32 s{b+3}, 0x00020000")
    A("s_and_b32 s61, s3, 1")
    A("s_lshl_b32 s77, s61, 5")
    A("s_add_u32 s77, s77, s63")
    A("s_lshl_b32 s61, s61, 6")
    A("s_add_u32 s75, s75, s61")
    A(f"s_mul_i32 s61, s52, {SS}")
    A("s_add_u32 s75, s75, s61")
    A(f"s_add_u32 s75, s75, {OFF_SOLO}")
    A("v_and_b32 v16, 15, v2")
    A("v_lshrrev_b32 v17, 4, v2")
    A("v_lshlrev_b32 v18, 12, v17")
    A("v_lshl_add_u32 v18, v16, 1, v18")
    A("v_lshlrev_b32 v19, 4, v17")
    A("v_lshl_add_u32 v20, v16, 7, v19")
    A("v_lshl_add_u32 v19, v16, 9, v19")
    A("s_lshr_b32 s74, s3, 2")
    A.label("O_tile")
    for k in range(8):
        A(f"v_mov_b32 v{64+k}, 0")
    A("s_lshl_b32 s78, s74, 13")
    A("s_mov_b32 s79, s77")
    A.label("O_k")
    A("buffer_load_dwordx4 v[24:27], v19, s[44:47], s78 offen")
    for m in range(2):
        for j in range(8):
            A(f"buffer_load_ushort v{28+8*m+j}, v18, s[{64+4*m}:{67+4*m}], s79 offen offset:{512*j}")
    A("s_waitcnt vmcnt(0)")
    for m in range(2):
        for j in range(4):
            A(f"v_lshl_or_b32 v{72+4*m+j}, v{28+8*m+2*j+1}, 16, v{28+8*m+2*j}")
    A("s_nop 1")
    for m in range(2):
        A(f"v_mfma_f32_16x16x32_bf16 {vr(64+4*m,4)}, {vr(72+4*m,4)}, v[24:27], {vr(64+4*m,4)}")
    A("s_add_u32 s78, s78, 64")
    A("s_add_u32 s79, s79, 16384")
    A("s_cmp_lt_u32 s79, 0x20000")
    A("s_nop 7")
    A("s_cbranch_scc1 O_k")
    for r in range(4):
        A(f"v_mul_f32 v{64+r}, s76, v{64+r}")
    rawenc(A, 64, 72, 28, 68)
    A("s_lshl_b32 s78, s74, 11")
    A("s_add_u32 s78, s78, s75")
    A(f"buffer_store_dwordx4 v[72:75], v20, s[32:35], s78 offen {SC}")
    A("s_add_u32 s74, s74, 4")
    A("s_cmp_lt_u32 s74, 625")
    A("s_cbranch_scc1 O_tile")
    A("s_waitcnt vmcnt(0)")
    A("s_barrier")
    A(f"s_add_u32 s36, s36, {OFF_SOLO}")
    A("s_addc_u32 s37, s37, 0")
    A(f"s_add_u32 s40, s40, {OFF_SOLO}")
    A("s_addc_u32 s41, s41, 0")

    A.label("K2_slow")
    A("v_lshrrev_b32 v1, 3, v2")
    A("s_sub_u32 s61, 15, s3")
    A("s_lshl_b32 s61, s61, 3")
    A("v_add_u32 v1, s61, v1")
    for j in range(3):
        A(f"v_add_u32 v{OA[j]}, {128*j}, v1")
        A(f"v_lshl_add_u32 v{OA[j]}, v{OA[j]}, 14, v{SUB8}")
    A.label("K2_slow_local")
    A("s_waitcnt lgkmcnt(0)")
    A("s_load_dwordx16 s[4:19], s[0:1], 0")
    A("s_waitcnt vmcnt(0) lgkmcnt(0)")
    WC = 64
    A(f"buffer_load_dwordx2 v[30:31], v{SUB8}, s[28:31], s63 offen")
    srd(A, 68, S_DST, S_DST + 1, 640000)
    A("v_lshlrev_b32 v13, 4, v2")
    A("s_cmp_lt_u32 s3, 8")
    A("s_cselect_b32 s79, 2, 3")
    A("s_waitcnt vmcnt(0)")
    A(f"v_lshlrev_b32 v{WC}, 16, v30")
    A(f"v_and_b32 v{WC+1}, 0xffff0000, v30")
    A(f"v_lshlrev_b32 v{WC+2}, 16, v31")
    A(f"v_and_b32 v{WC+3}, 0xffff0000, v31")
    for k in range(4):
        A(f"v_mul_f32 v{WC+k}, {hex(NLOG2E)}, v{WC+k}")

    def decode(dst, src):
        for k in range(4):
            A(f"v_and_b32 v40, 0xffff0000, v{src+k}")
            A("v_log_f32 v40, v40")
            A(f"v_lshlrev_b32 v41, 1, v{src+k}")
            A("v_and_b32 v41, 0x80000000, v41")
            A(f"v_and_b32 v42, 0x3fff0000, v{src+k}")
            A("v_or3_b32 v41, v41, v42, 2.0")
            A(f"v_cmp_gt_i32 vcc, 0, v{src+k}")
            A("s_nop 1")
            A(f"v_cndmask_b32 v{dst+k}, v40, v41, vcc")

    TA, NODE, DS, GG = 68, 72, 76, 80
    A.label("K2_s_chunk")
    A(f"v_lshrrev_b32 v{NODE}, 14, v{OA[0]}")
    A(f"v_lshl_add_u32 v14, v{NODE}, 12, v{SUB16}")
    A(f"buffer_load_dwordx4 {vr(RA,4)}, v14, s[40:43], s86 offen {SC}")
    A(f"buffer_load_dwordx2 {vr(XR[0],2)}, v{OA[0]}, s[44:47], s87 offen")
    A(f"v_lshl_add_u32 v{NODE}, v{NODE}, 5, s53")
    for k in range(4):
        A(f"v_mov_b32 v{DEN+k}, 0")
        A(f"v_mov_b32 v{NUM+k}, 0")
    A("s_waitcnt vmcnt(0)")
    decode(TA, RA)
    A("s_mov_b32 s75, 0")
    A.label("K2_s_blk")
    A(f"buffer_load_dwordx4 {vr(DS,4)}, v13, s[68:71], s75 offen")
    A("s_mov_b32 s74, 0")
    A("s_waitcnt vmcnt(0)")
    A.label("K2_s_comp")
    A(f"v_and_b32 v1, 31, v{DS}")
    A("v_cmp_eq_u32 s[76:77], s53, v1")
    A("s_nop 1")
    A.label("K2_s_edge")
    A("s_cmp_eq_u64 s[76:77], 0")
    A("s_cbranch_scc1 K2_s_comp_done")
    A("s_ff1_i32_b64 s78, s[76:77]")
    A("s_bitset0_b64 s[76:77], s78")
    A(f"v_readlane_b32 s80, v{DS}, s78")
    A("s_nop 1")
    A(f"v_cmp_eq_u32 vcc, s80, v{NODE}")
    A("s_nop 1")
    A("s_cbranch_vccz K2_s_edge")
    A("s_lshl_b32 s78, s78, 4")
    A("s_add_u32 s78, s78, s75")
    A("s_add_u32 s78, s78, s74")
    A(f"s_load_dword s80, s[{S_SRC}:{S_SRC+1}], s78")
    A("s_lshr_b32 s81, s78, 3")
    A("s_lshl_b32 s81, s81, 2")
    A(f"s_load_dword s81, s[{S_E}:{S_E+1}], s81")
    A("s_mov_b64 exec, vcc")
    A("s_waitcnt lgkmcnt(0)")
    A(f"v_mov_b32 v{IX}, s80")
    A(f"buffer_load_dwordx4 {vr(GG,4)}, {vr(IX,2)}, s[36:39], 0 idxen offen {SC}")
    A("s_lshl_b32 s80, s81, 16")
    A("s_and_b32 s81, s81, 0xffff0000")
    A("s_bitcmp1_b32 s78, 2")
    A("s_cselect_b32 s80, s81, s80")
    A("s_waitcnt vmcnt(0)")
    decode(U0, GG)
    for k in range(4):
        A(f"v_sub_f32 v{U0+k}, v{U0+k}, v{TA+k}")
    for k in range(4):
        A(f"v_fma_f32 v{U0+k}, s80, v{WC+k}, v{U0+k}")
    for k in range(4):
        A(f"v_exp_f32 v{U0+k}, v{U0+k}")
    for k in range(4):
        A(f"v_lshlrev_b32 v{V0+k}, 16, v{GG+k}")
    for k in range(4):
        A(f"v_add_f32 v{U0+k}, 1.0, v{U0+k}")
    for k in range(4):
        A(f"v_rcp_f32 v{U0+k}, v{U0+k}")
    A("s_nop 0")
    for k in range(4):
        A(f"v_add_f32 v{DEN+k}, v{DEN+k}, v{U0+k}")
        A(f"v_fma_f32 v{NUM+k}, v{U0+k}, v{V0+k}, v{NUM+k}")
    A("s_mov_b64 exec, -1")
    A("s_branch K2_s_edge")
    A.label("K2_s_comp_done")
    for k in range(3):
        A(f"v_mov_b32 v{DS+k}, v{DS+k+1}")
    A("s_add_u32 s74, s74, 4")
    A("s_cmp_lt_u32 s74, 16")
    A("s_cbranch_scc1 K2_s_comp")
    A("s_add_u32 s75, s75, 1024")
    A("s_cmp_lt_u32 s75, 640000")
    A("s_cbranch_scc1 K2_s_blk")
    for k in range(4):
        A(f"v_add_f32 v{DEN+k}, {hex(f32(1e-6))}, v{DEN+k}")
    for k in range(4):
        A(f"v_rcp_f32 v{DEN+k}, v{DEN+k}")
    for k in range(4):
        A(f"v_lshlrev_b32 v{V0+k}, 16, v{RA+k}")
    A(f"v_lshlrev_b32 v{V1}, 16, v{XR[0]}")
    A(f"v_and_b32 v{V1+1}, 0xffff0000, v{XR[0]}")
    A(f"v_lshlrev_b32 v{V1+2}, 16, v{XR[0]+1}")
    A(f"v_and_b32 v{V1+3}, 0xffff0000, v{XR[0]+1}")
    for k in range(4):
        A(f"v_fma_f32 v{V0+k}, v{NUM+k}, v{DEN+k}, v{V0+k}")
        A(f"v_mul_f32 v40, 0, v{V0+k}")
        A(f"v_cmp_lt_f32 vcc, 0, v{V0+k}")
        A("s_nop 1")
        A(f"v_cndmask_b32 v{V0+k}, v40, v{V0+k}, vcc")
        A(f"v_add_f32 v{V0+k}, v{V0+k}, v{V1+k}")
    A(f"v_cvt_pk_bf16_f32 v{V1}, v{V0}, v{V0+1}")
    A(f"v_cvt_pk_bf16_f32 v{V1+1}, v{V0+2}, v{V0+3}")
    A(f"buffer_store_dwordx2 {vr(V1,2)}, v{OA[0]}, s[48:51], s87 offen")
    A("s_waitcnt vmcnt(0)")
    A(f"v_mov_b32 v{OA[0]}, v{OA[1]}")
    A(f"v_mov_b32 v{OA[1]}, v{OA[2]}")
    A("s_sub_u32 s79, s79, 1")
    A("s_cmp_lg_u32 s79, 0")
    A("s_cbranch_scc1 K2_s_chunk")
    A("s_endpgm")
    A.label("K_code_end")


def desc(name, vgpr, sgpr=102):
    return f""".amdhsa_kernel {name}
  .amdhsa_next_free_vgpr {vgpr}
  .amdhsa_next_free_sgpr {sgpr}
  .amdhsa_accum_offset {vgpr}
  .amdhsa_group_segment_fixed_size 0
  .amdhsa_kernarg_size 96
  .amdhsa_user_sgpr_count 2
  .amdhsa_user_sgpr_kernarg_segment_ptr 1
  .amdhsa_system_sgpr_workgroup_id_x 1
.end_amdhsa_kernel"""


def main():
    A = Asm()
    A.L.append(f".globl {KN}\n.p2align 8\n.type {KN},@function")
    gen(A)
    hdr = open("cdna_kernels/" + NAME + ".s.ref").read().split("\n")
    head = [l for l in hdr if l.startswith(";") and "@launch" not in l]
    pre = [l for l in A.L if l.startswith("; STAMPS") or l.startswith("; GROUPS")]
    body = [l for l in A.L if l not in pre]
    out = head + [
        f"; @launch kernel={KN} grid=(256,1,1) block=(1024,1,1) lds={LDS_TOTAL}",
        '.amdgcn_target "amdgcn-amd-amdhsa--gfx950"',
        ".text",
        ".set CODE_LIM, (K_rare - K_pc)",
    ] + pre + body + ['.section .rodata,"a"', ".p2align 6", desc(KN, 128), ""]
    open(sys.argv[1], "w").write("\n".join(out))


main()
```
